```python
import torch

def _softmax(x, axis=-1):
    return torch.softmax(x, dim=axis)
def _gelu(x):
    return torch.nn.functional.gelu(x, approximate="tanh")
def _silu(x):
    return torch.nn.functional.silu(x)
def _sigmoid(x):
    return torch.sigmoid(x)
def _layernorm(x, axis=-1, eps=1e-5):
    m = x.mean(dim=axis, keepdim=True)
    v = x.var(dim=axis, keepdim=True, unbiased=False)
    return (x - m) / torch.sqrt(v + eps)
def _scatter_add(tgt, idx, src, axis=0):
    return tgt.clone().index_add_(axis, idx, src)
def _segment_sum(src, seg, n):
    out = torch.zeros((n,) + src.shape[1:], dtype=src.dtype)
    return out.index_add_(0, seg, src)
def _pad(x, pw):
    flat = tuple(v for pair in reversed(pw) for v in pair)
    return torch.nn.functional.pad(x, flat)

kernel_name = 'parallel_sum__gqa_block_cached__geglu_ffn__decode'

def setup_inputs():

    _w = (lambda a: (lambda t: t.to(torch.bfloat16) if t.is_floating_point() else t)(torch.as_tensor(a)))
    def _A_setup():
        B, Sq, D = 2, 1, 512
        Hq, Hkv, Sk, Dh = 32, 8, 32768, 128
        assert Hq % Hkv == 0, (Hq, Hkv)
        return {
            "x": _w((lambda *s: torch.randn(*s, dtype=torch.bfloat16) * 0.05)(B, Sq, D)),
            "k_cache": _w((lambda *s: torch.randn(*s, dtype=torch.bfloat16) * 3.2)(B, Hkv, Sk, Dh)),
            "v_cache": _w((lambda *s: torch.randn(*s, dtype=torch.bfloat16) * 1.6)(B, Hkv, Sk, Dh)),
            "wq": _w((lambda *s: torch.randn(*s, dtype=torch.bfloat16) * 3.2)(D, Hq * Dh) * (D ** -0.5)),
            "wo": _w((lambda *s: torch.randn(*s, dtype=torch.bfloat16) * 1.6)(Hq * Dh, D) * ((Hq * Dh) ** -0.5)),
        }
    _A_in = _A_setup()

    def _B_setup():
        B, S, D, F = 2, 1, 512, 1792
        return {
            "x": _w((lambda *s: torch.randn(*s, dtype=torch.bfloat16) * 0.05)(B, S, D)),
            "w_gate": _w((lambda *s: torch.randn(*s, dtype=torch.bfloat16) * 0.05)(D, F)),
            "w_up": _w((lambda *s: torch.randn(*s, dtype=torch.bfloat16) * 0.05)(D, F)),
            "w_down": _w((lambda *s: torch.randn(*s, dtype=torch.bfloat16) * 0.05)(F, D)),
        }
    _B_in = _B_setup()

    return {
        "A_x": _A_in["x"],
        "A_k_cache": _A_in["k_cache"],
        "A_v_cache": _A_in["v_cache"],
        "A_wq": _A_in["wq"],
        "A_wo": _A_in["wo"],
        "B_x": _B_in["x"],
        "B_w_gate": _B_in["w_gate"],
        "B_w_up": _B_in["w_up"],
        "B_w_down": _B_in["w_down"],
    }

def reference(A_x, A_k_cache, A_v_cache, A_wq, A_wo, B_x, B_w_gate, B_w_up, B_w_down):
    def _A_ref(x, k_cache, v_cache, wq, wo):
        B, Sq, D = x.shape
        Hq, Dh = 32, 128
        Hkv = k_cache.shape[1]
        rep = Hq // Hkv
        q = (lambda x, *d: x.permute(*d))((x @ wq).reshape(B, Sq, Hq, Dh), 0, 2, 1, 3)
        k = (lambda x, n, axis: torch.repeat_interleave(x, n, dim=axis))(k_cache, rep, axis=1)
        v = (lambda x, n, axis: torch.repeat_interleave(x, n, dim=axis))(v_cache, rep, axis=1)
        scores = torch.einsum("bhqd,bhkd->bhqk", q, k) * (Dh ** -0.5)
        p = _softmax(scores, axis=-1)
        o = torch.einsum("bhqk,bhkd->bhqd", p, v)
        return (lambda x, *d: x.permute(*d))(o, 0, 2, 1, 3).reshape(B, Sq, Hq * Dh) @ wo

    def _B_ref(x, w_gate, w_up, w_down):
        return (_gelu(x @ w_gate) * (x @ w_up)) @ w_down

    x = A_x
    xn = _layernorm(x, axis=-1)
    return x + _A_ref(xn, A_k_cache, A_v_cache, A_wq, A_wo) + _B_ref(xn, B_w_gate, B_w_up, B_w_down)
```

```python
import re
TRANS = ("v_exp_f32","v_log_f32","v_rcp_f32","v_rsq_f32","v_sqrt_f32","v_sin_f32","v_cos_f32")
def regs(op):
    op=op.strip()
    op=op.lstrip('-')
    m=re.fullmatch(r'abs\((.*)\)',op)
    if m: op=m.group(1)
    m=re.fullmatch(r'([vsa])(\d+)',op)
    if m: return {(m.group(1),int(m.group(2)))}
    m=re.fullmatch(r'([vsa])\[(\d+):(\d+)\]',op)
    if m: return {(m.group(1),k) for k in range(int(m.group(2)),int(m.group(3))+1)}
    if op=="vcc": return {('s','vcc')}
    if op in("vcc_lo","vcc_hi"): return {('s','vcc')}
    return set()
def split_ops(rest):
    ops=[];cur="";d=0
    for ch in rest:
        if ch=='[': d+=1
        if ch==']': d-=1
        if ch==',' and d==0: ops.append(cur.strip());cur=""
        else: cur+=ch
    if cur.strip(): ops.append(cur.strip())
    if ops: ops[-1]=ops[-1].split()[0]
    return ops
class Ins: pass
def parse(text):
    t=text.strip(); p=t.split(None,1); mn=p[0]; rest=p[1] if len(p)>1 else ""
    ops=split_ops(rest)
    I=Ins(); I.mn=mn; I.text=t; I.states=1; I.w=set(); I.r=set(); I.kind="other"; I.C=set(); I.AB=set(); I.dpp=False; I.data=set()
    R=[regs(o) for o in ops]
    U=lambda l:set().union(*l) if l else set()
    if mn=="s_nop": I.states=int(ops[0],0)+1; I.kind="nop"
    elif mn.startswith("v_mfma"):
        I.kind="mfma"; I.w=R[0]; I.AB=R[1]|R[2]; I.C=R[3]; I.r=I.AB|I.C
    elif mn.startswith("v_"):
        I.kind="valu"; I.dpp=mn.endswith("_dpp")
        if mn.startswith("v_permlane"): I.w=R[0]|R[1]; I.r=R[0]|R[1]
        else:
            I.w=R[0]; I.r=U(R[1:])
            if mn.startswith("v_fmac") or I.dpp or mn.startswith("v_writelane"): I.r|=R[0]
            if mn.startswith("v_cndmask") and len(ops)==3: I.r|={('s','vcc')}
    elif mn.startswith("buffer_load") or mn.startswith("global_load"):
        I.kind="vload"; I.w=R[0]; I.r=U(R[1:])
    elif mn.startswith("buffer_store"):
        I.kind="vstore"; I.r=U(R); I.data=R[0] if len(R[0])>=3 else set()
    elif mn.startswith("global_store"):
        I.kind="vstore"; I.r=U(R); I.data=R[1] if len(R[1])>=3 else set()
    elif mn.startswith("buffer_atomic") or mn.startswith("global_atomic"):
        I.kind="vstore"; I.r=U(R); I.w=R[0] if " sc0" in t else set()
    elif mn.startswith("ds_read") or mn.startswith("ds_bpermute") or mn.startswith("ds_swizzle"):
        I.kind="dsread"; I.w=R[0]; I.r=U(R[1:])
    elif mn.startswith("ds_"):
        I.kind="dswrite"; I.r=U(R)
    elif mn.startswith("s_"):
        I.kind="salu"
        if not (mn.startswith("s_cmp") or mn.startswith("s_cbranch") or mn in("s_branch","s_waitcnt","s_barrier","s_endpgm","s_sleep","s_setprio")):
            I.w=R[0] if R else set(); I.r=U(R[1:])
        else: I.r=U(R)
    return I
def need(P,C):
    n=0
    vw={x for x in P.w if x[0] in 'va'}; sw={x for x in P.w if x[0]=='s'}
    if P.kind=="valu":
        if C.kind=="valu" and C.dpp and vw&C.r: n=max(n,2)
        if C.kind=="mfma" and vw&C.r: n=max(n,2)
        if C.mn.startswith("v_readlane") or C.mn.startswith("v_readfirstlane"):
            if vw&C.r: n=max(n,1)
            if sw&C.r: n=max(n,4)
        if C.mn.startswith("v_writelane") and sw&C.r: n=max(n,4)
        if C.mn.startswith("v_permlane") and vw&C.r: n=max(n,2)
        if P.mn in TRANS and C.kind=="valu" and vw&C.r: n=max(n,1)
        if C.kind=="valu" and sw&C.r: n=max(n,2)
        if C.kind in("vload","vstore") and sw&C.r: n=max(n,5)
        if C.kind=="salu" and sw&C.r: n=max(n,1)
    if P.kind=="mfma":
        if C.kind in("valu","vload","vstore","dsread","dswrite") and (vw&(C.r|C.w)): n=max(n,8)
        if C.kind=="mfma":
            if vw&C.AB: n=max(n,8)
            if vw&C.C and not (vw==C.C and P.mn==C.mn): n=max(n,6)
        if C.kind=="valu" and P.C&C.w: n=max(n,3)
    if P.kind=="vstore" and P.data:
        if C.kind=="valu" and P.data&C.w: n=max(n,2)
        elif P.data&C.w: n=max(n,1)
    return n
class Em:
    def __init__(s):
        s.out=[]; s.hist=[]; s.vm=[]; s.nsafe=0; s.nnop=0
    def raw(s,t): s.out.append(t)
    def label(s,l): s.out.append(l+":")
    def reset(s): s.hist=[]; s.vm=[]
    def safe(s):
        s.out.append(f"@SAFE{s.nsafe}"); s.nsafe+=1
    def __call__(s,text,tag=None):
        for line in text.split("\n"):
            line=line.strip()
            if not line: continue
            C=parse(line); d=0; pad=0
            for P in reversed(s.hist):
                pad=max(pad,need(P,C)-d); d+=P.states
                if d>=12: break
            if pad>0:
                N=parse(f"s_nop {pad-1}"); s.out.append("    "+N.text); s.hist.append(N); s.nnop+=1
            s.out.append("    "+line); s.hist.append(C); s.hist=s.hist[-16:]
            if C.kind in("vload","vstore"): s.vm.append(tag)
    def wait_tag(s,tag,extra=""):
        if tag not in s.vm: return
        idx=len(s.vm)-1-s.vm[::-1].index(tag)
        n=len(s.vm)-1-idx
        s(f"s_waitcnt vmcnt({n}){extra}"); s.vm=s.vm[idx+1:]
    def wait_n(s,n):
        if len(s.vm)>n:
            s(f"s_waitcnt vmcnt({n})"); s.vm=s.vm[len(s.vm)-n:] if n>0 else []
    def landed(s,tag): return tag not in s.vm
```

```python
import sys, subprocess, re, os
sys.path.insert(0, os.path.dirname(os.path.abspath(__file__)))
from emit import Em
KN="parallel_sum__gqa_block_cached__geglu_ffn__decode_kernel"
DPP="row_mask:0xf bank_mask:0xf"
WS_EPOCH=0; WS_QP=0x10000; WS_GP=0x30000; WS_ML=0x50000; WS_OP=0x80000; WS_YP=0x100000; WS_FP=0x140000; WS_DBG=0x180000; WS_SIZE=0x200000
L_FLAG=0; L_ML=64; L_W=256; L_Q=1024; L_XN=2048; L_O=4096; L_Y=12288; LDS_SIZE=16384
SPIN=0x4000
LOG2E=0x3fb8aa3b

def gen(pace=(5,), qstep=44, dbg=False, warm=True, cu=2, hpace=8):
    E=Em()
    nst=[0]
    def stamp(k):
        if dbg: E(f"s_memrealtime s[{60+2*k}:{61+2*k}]")
    def finish():
        if dbg: E("s_branch L_dbg")
        else: E("s_endpgm")
        E.reset()
    def epoch_load(v):
        E(f"v_mov_b32 v{v}, 0"); E(f"buffer_load_dword v{v}, v{v}, s[16:19], 0 offen offset:{WS_EPOCH} sc1")
    def tag_setup(bits, v=None):
        if v is not None:
            E(f"v_readfirstlane_b32 s36, v{v}"); E("s_add_u32 s36, s36, 0x01010101")
        w = bits<<16
        for k in range(4): E(f"s_bfe_u32 s{37+k}, s36, {hex(w|(8*k))}")
    def tag_bits(bits):
        w = bits<<16
        for k in range(4): E(f"s_bfe_u32 s{37+k}, s36, {hex(w|(8*k))}")
    def tag_insert(r, vmask):
        for k in range(4): E(f"v_and_or_b32 v{r+k}, v{r+k}, v{vmask}, s{37+k}")
    def check(units, t, bits):
        for n,a in enumerate(units):
            for k in range(4): E(f"v_xor_b32 v{a+k}, s{37+k}, v{a+k}")
            if n==0: E(f"v_or_b32 v{t}, v{a}, v{a+1}")
            else: E(f"v_or3_b32 v{t}, v{a}, v{a+1}, v{t}")
            E(f"v_or3_b32 v{t}, v{a+2}, v{a+3}, v{t}")
        E(f"v_and_b32 v{t}, {hex((1<<bits)-1)}, v{t}")
        E(f"v_cmp_ne_u32 vcc, 0, v{t}")
    pollid=[0]
    def poll(loads, units, t, bits, masked, sleep=0, pre=None):
        k=pollid[0]; pollid[0]+=1
        E(f"s_mov_b32 s50, {SPIN}")
        E.label(f"L_poll{k}")
        for l in loads: E(l)
        if pre: pre()
        E("s_waitcnt vmcnt(0) lgkmcnt(0)"); E.vm=[]
        check(units,t,bits)
        E(f"s_cbranch_vccz L_pollx{k}")
        if masked: E("s_mov_b64 exec, vcc")
        if sleep: E(f"s_sleep {sleep}")
        E("s_sub_u32 s50, s50, 1"); E(f"s_cbranch_scc0 L_poll{k}")
        E.label(f"L_pollx{k}")
        if masked: E("s_mov_b64 exec, -1")
    def selectors(sel, t):
        E(f"v_and_b32 v{t}, 1, v0"); E(f"v_cmp_eq_u32 vcc, 1, v{t}")
        E(f"v_mov_b32 v{t+1}, 0x0c0c0100"); E(f"v_mov_b32 v{t+2}, 0x01000c0c"); E(f"v_cndmask_b32 v{t+1}, v{t+1}, v{t+2}, vcc")
        E(f"v_mov_b32 v{t+2}, 0x0c0c0302"); E(f"v_mov_b32 v{t+3}, 0x03020c0c"); E(f"v_cndmask_b32 v{t+2}, v{t+2}, v{t+3}, vcc")
        E(f"v_bfe_u32 v{t}, v0, 3, 1"); E(f"v_bfe_u32 v{t+3}, v0, 1, 1"); E(f"v_lshl_add_u32 v{t}, v{t}, 1, v{t+3}")
        E(f"v_mov_b32 v{t+3}, 0x0c0c0c0c")
        for k in range(4):
            E(f"v_cmp_eq_u32 vcc, {k}, v{t}")
            E(f"v_cndmask_b32 v{sel+2*k}, v{t+3}, v{t+1}, vcc"); E(f"v_cndmask_b32 v{sel+2*k+1}, v{t+3}, v{t+2}, vcc")
    def buildA(dst, pk, par, sel):
        for k in range(4): E(f"v_perm_b32 v{dst+k}, v{pk}, v{pk}, v{sel+2*k+par}")
    def rbf(d, s):
        E(f"v_cvt_pk_bf16_f32 v{d}, v{s}, v{s}"); E(f"v_and_b32 v{d}, 0xffff0000, v{d}")
    def srd(base, size):
        E(f"s_mov_b32 s{base+2}, {hex(size)}"); E(f"s_mov_b32 s{base+3}, 0x20000")

    E("s_load_dwordx2 s[8:9], s[0:1], 8")
    E("s_load_dwordx2 s[16:17], s[0:1], 88")
    stamp(0)
    E("v_lshrrev_b32 v3, 6, v0")
    E("s_cmp_ge_u32 s2, 256"); E("s_cbranch_scc1 L_end")
    E("v_readfirstlane_b32 s3, v3")
    E("v_and_b32 v0, 63, v0")
    E("s_mov_b32 s51, 0")
    srd(16, WS_SIZE)
    E("s_cmp_lt_u32 s3, 4"); E("s_cbranch_scc1 L_stream")
    E("v_mov_b32 v4, 0"); E("v_lshlrev_b32 v2, 2, v0"); E(f"ds_write_b32 v2, v4 offset:0")
    E("s_load_dwordx2 s[24:25], s[0:1], 0"); E("s_load_dwordx2 s[4:5], s[0:1], 24"); E("s_load_dwordx4 s[52:55], s[0:1], 48"); E("s_load_dwordx4 s[56:59], s[0:1], 64")
    srd(24,2048); E("s_mov_b32 s23, 0x20000")
    E("s_waitcnt lgkmcnt(0)"); E("s_barrier")
    E("s_cmp_eq_u32 s3, 4"); E("s_cbranch_scc1 L_h0")
    E("s_cmp_eq_u32 s3, 5"); E("s_cbranch_scc1 L_h1")
    E("s_cmp_eq_u32 s3, 6"); E("s_cbranch_scc1 L_h2")
    E("s_branch L_h3"); E.reset()
    E.label("L_stream")

    vK,vV,vM0,vM1,vMX,vL,vQ=1,2,4,5,6,7,8
    D=[12,16,20,24]; T=[28,29,30,31]; X=[32,34]; ACC=36; S=44; RING0=76; NSLOT=45
    SEL=216; WT=224; PA=226; OA=227; YA=229; MH=230; WA=231; U0=232; U1=236; O=240; PK=244; CT=246
    E("s_lshl_b32 s28, s2, 19"); E("s_lshl_b32 s29, s3, 12"); E("s_add_u32 s28, s28, s29")
    E("v_and_b32 v1, 3, v0"); E("v_lshlrev_b32 v1, 4, v1"); E("v_lshrrev_b32 v3, 4, v0"); E("v_lshl_add_u32 v1, v3, 6, v1")
    E("v_bfe_u32 v3, v0, 2, 2"); E("v_lshl_add_u32 v1, v3, 8, v1")
    srd(8, 0x8000000)
    E("s_waitcnt lgkmcnt(0)")
    seq=[('K',n) for n in range(128)]+[('V',n) for n in range(128)]+[('W',n) for n in range(4)]
    free=list(range(NSLOT)); slot={}
    reserve=[False]
    RES=set(range((SEL-RING0)//4, NSLOT))
    def release(tag):
        s=slot[tag]
        free.append(s)
    def issue(tag):
        cand=[s for s in free if not (reserve[0] and s in RES)]
        assert cand, ("ring exhausted",tag)
        s=cand[0]; free.remove(s); slot[tag]=s; r=RING0+4*s
        kind,n=tag
        if kind=='K': E(f"buffer_load_dwordx4 v[{r}:{r+3}], v{vK}, s[8:11], s28 offen offset:{(n&3)*1024} nt",tag)
        elif kind=='V': E(f"buffer_load_dwordx4 v[{r}:{r+3}], v{vV}, s[12:15], s28 offen offset:{(n&3)*1024} nt",tag)
        else: E(f"buffer_load_dwordx4 v[{r}:{r+3}], v{WA}, s[20:23], s30 offen offset:{n*1024} nt",tag)
        if kind in 'KV' and (n&3)==3:
            if tag==('K',127): E(f"s_sub_u32 s28, s28, {31*16384}")
            elif tag!=('V',127): E("s_add_u32 s28, s28, 16384")
    def setup1():
        E("s_barrier")
        E("s_setprio 2")
        E("s_load_dwordx2 s[12:13], s[0:1], 16"); E("s_load_dwordx2 s[20:21], s[0:1], 32")
        srd(12,0x8000000); srd(20,0x400000)
        E(f"v_lshlrev_b32 v{vV}, 4, v0")
        for k in range(1,4):
            m=0x11111111<<k
            E(f"s_mov_b32 s{42+2*k}, {hex(m)}"); E(f"s_mov_b32 s{43+2*k}, {hex(m)}")
        E("v_mov_b32 v3, 0xffff0000"); E(f"v_mov_b32 v{vM0}, 0xffff")
        E(f"v_cndmask_b32 v{vM0}, v{vM0}, v3, s[44:45]"); E(f"v_cndmask_b32 v{vM1}, 0, v{vM0}, s[46:47]"); E(f"v_cndmask_b32 v{vM1}, v{vM1}, v3, s[48:49]")
        E(f"v_cndmask_b32 v{vM0}, v{vM0}, 0, s[46:47]"); E(f"v_cndmask_b32 v{vM0}, v{vM0}, 0, s[48:49]")
        E(f"v_mov_b32 v{vMX}, 0xff800000")
        for k in range(8): E(f"v_mov_b32 v{ACC+k}, 0")
    def qready():
        stamp(1)
        E(f"s_mov_b32 s50, {SPIN*8}"); E("v_mov_b32 v3, 0")
        E.label("L_qw")
        E(f"ds_read_b64 v[{T[0]}:{T[1]}], v3 offset:{L_FLAG}"); E(f"ds_read_b128 v[{vQ}:{vQ+3}], v{vV} offset:{L_Q}")
        E("s_waitcnt lgkmcnt(0)")
        E(f"v_cmp_ne_u32 vcc, 0, v{T[0]}"); E("s_cbranch_vccnz L_qx")
        E("s_sub_u32 s50, s50, 1"); E("s_cbranch_scc0 L_qw")
        E.label("L_qx")
        E(f"v_readfirstlane_b32 s36, v{T[1]}")
        stamp(2)
    dnext=[0]; pend=[]
    def k_reduce(items):
        tt={n:(T[2*i],T[2*i+1]) for i,(n,d) in enumerate(items)}
        for n,d in items:
            a,b=tt[n]; E(f"v_mov_b32_dpp v{a}, v{d} quad_perm:[0,0,0,0] {DPP}"); E(f"v_mov_b32_dpp v{b}, v{d+2} quad_perm:[2,2,2,2] {DPP}")
        for n,d in items:
            a,b=tt[n]; E(f"v_add_f32_dpp v{a}, v{d+1}, v{a} quad_perm:[1,1,1,1] {DPP}"); E(f"v_add_f32_dpp v{b}, v{d+3}, v{b} quad_perm:[3,3,3,3] {DPP}")
        for n,d in items:
            a,b=tt[n]; t=n>>2; j=n&3
            if j==0: E(f"v_add_f32 v{S+t}, v{a}, v{b}")
            else:
                E(f"v_add_f32 v{a}, v{a}, v{b}"); E(f"v_cndmask_b32 v{S+t}, v{S+t}, v{a}, s[{42+2*j}:{43+2*j}]")
            if j==3:
                rbf(S+t,S+t); E(f"v_mul_f32 v{S+t}, 0x3db504f3, v{S+t}"); rbf(S+t,S+t); E(f"v_max_f32 v{vMX}, v{vMX}, v{S+t}")
    def k_consume(ns):
        new=[]
        for n in ns:
            d=D[dnext[0]%4]; dnext[0]+=1; r=RING0+4*slot[('K',n)]
            E(f"v_mfma_f32_16x16x32_bf16 v[{d}:{d+3}], v[{r}:{r+3}], v[{vQ}:{vQ+3}], 0"); release(('K',n)); new.append((n,d))
        if pend: k_reduce(list(pend))
        pend[:]=new
    def allred(op, v, t):
        E(f"{op}_dpp v{v}, v{v}, v{v} quad_perm:[1,0,3,2] {DPP}"); E(f"{op}_dpp v{v}, v{v}, v{v} quad_perm:[2,3,0,1] {DPP}")
        E(f"v_mov_b32 v{t}, v{v}"); E(f"v_permlane16_swap_b32 v{t}, v{v}"); E(f"{op} v{v}, v{v}, v{t}")
        E(f"v_mov_b32 v{t}, v{v}"); E(f"v_permlane32_swap_b32 v{t}, v{v}"); E(f"{op} v{v}, v{v}, v{t}")
    def sm_head():
        k_reduce(list(pend)); pend[:]=[]
        stamp(3)
        allred("v_max_f32", vMX, 3); E(f"v_mov_b32 v{vL}, 0")
    def sm_chunk(ts):
        for t in ts: E(f"v_sub_f32 v{S+t}, v{S+t}, v{vMX}")
        for t in ts: E(f"v_mul_f32 v{S+t}, {hex(LOG2E)}, v{S+t}")
        for t in ts: E(f"v_exp_f32 v{S+t}, v{S+t}")
        for t in ts: E(f"v_add_f32 v{vL}, v{vL}, v{S+t}")
        for t in ts: E(f"v_cvt_pk_bf16_f32 v{S+t}, v{S+t}, v{S+t}")
    def sm_tail():
        allred("v_add_f32", vL, 3)
        E(f"v_lshlrev_b32 v3, 1, v0"); E("s_lshl_b32 s29, s3, 5"); E("v_add_u32 v3, s29, v3")
        E("s_mov_b64 exec, 0x1111"); E(f"ds_write_b64 v3, v[{vMX}:{vL}] offset:{L_ML}"); E("s_mov_b64 exec, -1")
        stamp(4)
    xn=[0]
    def v_consume(n):
        x=X[xn[0]%2]; xn[0]+=1; t=n>>2; j=n&3; r=RING0+4*slot[('V',n)]
        E(f"v_and_b32_dpp v{x}, v{S+t}, v{vM0} quad_perm:[{j},{j},{j},{j}] {DPP}")
        E(f"v_and_b32_dpp v{x+1}, v{S+t}, v{vM1} quad_perm:[{j},{j},{j},{j}] {DPP}")
        return (x,r,n)
    def v_mfma(x,r,n):
        E(f"v_mfma_f32_16x16x16_bf16 v[{ACC}:{ACC+3}], v[{x}:{x+1}], v[{r}:{r+1}], v[{ACC}:{ACC+3}]")
        E(f"v_mfma_f32_16x16x16_bf16 v[{ACC+4}:{ACC+7}], v[{x}:{x+1}], v[{r+2}:{r+3}], v[{ACC+4}:{ACC+7}]")
        release(('V',n))
    def tail_setup_a():
        assert all(s in free for s in RES)
        tag_setup(8)
        selectors(SEL, CT)
    def tail_setup_b():
        E(f"v_bfe_u32 v{CT}, v0, 2, 1"); E(f"v_lshlrev_b32 v{PA}, 10, v{CT}")
        E(f"v_bfe_u32 v{CT}, v0, 3, 1"); E(f"v_lshl_add_u32 v{PA}, v{CT}, 8, v{PA}")
        E(f"v_and_b32 v{CT}, 3, v0"); E(f"v_lshl_add_u32 v{PA}, v{CT}, 6, v{PA}")
        E(f"v_lshrrev_b32 v{CT}, 4, v0"); E(f"v_lshl_add_u32 v{PA}, v{CT}, 4, v{PA}")
        E("s_lshr_b32 s29, s2, 2"); E("s_lshl_b32 s31, s29, 2"); E("s_add_u32 s31, s31, s3")
        E("s_lshl_b32 s30, s31, 14"); E("s_lshl_b32 s31, s31, 11"); E(f"s_add_u32 s31, s31, {WS_OP}")
        E("s_and_b32 s33, s2, 3"); E("s_lshl_b32 s34, s33, 8"); E("s_add_u32 s30, s30, s34")
        E(f"v_and_b32 v{WA}, 15, v0"); E(f"v_lshlrev_b32 v{WA}, 4, v{WA}"); E(f"v_lshl_add_u32 v{WA}, v{CT}, 12, v{WA}")
        E("s_lshl_b32 s32, s33, 16"); E("s_lshl_b32 s29, s29, 6"); E("s_add_u32 s32, s32, s29"); E(f"s_add_u32 s32, s32, {WS_YP}")
        E(f"v_lshrrev_b32 v{YA}, 2, v0"); E(f"v_lshlrev_b32 v{YA}, 12, v{YA}"); E(f"v_and_b32 v{CT}, 3, v0"); E(f"v_lshl_add_u32 v{YA}, v{CT}, 4, v{YA}")
        E(f"v_mov_b32 v{MH}, 0xffffff00")
        E(f"v_lshlrev_b32 v{OA}, 5, v0"); E("s_lshl_b32 s29, s3, 11"); E(f"v_add_u32 v{OA}, s29, v{OA}")
        E(f"v_and_b32 v{228}, 15, v0"); E(f"v_lshlrev_b32 v228, 3, v228")
        E("s_lshl_b32 s29, s3, 10"); E(f"v_add_u32 v{vK}, s29, v{vV}")
    acts=[('q',)]+[('K',n) for n in range(128)]+[('smh',)]+[('smc',list(range(8*c,8*c+8))) for c in range(4)]+[('smt',)]+[('V',n) for n in range(128)]
    ai=0
    npace=len(pace)
    def do_actions(step, final=False):
        nonlocal ai
        if ai>=len(acts): return
        a=acts[ai]
        if a[0]=='q':
            if step<qstep: return
            qready(); ai+=1; a=acts[ai]
        if a[0]=='K':
            ns=[]
            while len(ns)<cu and acts[ai][0]=='K' and E.landed(acts[ai]) and acts[ai] in slot: ns.append(acts[ai][1]); ai+=1
            if ns: k_consume(ns)
            return
        if a[0]=='smh': sm_head(); ai+=1; return
        if a[0]=='smc': sm_chunk(a[1]); ai+=1; return
        if a[0]=='smt': sm_tail(); ai+=1; return
        if a[0]=='V':
            c=0; st=[]
            while c<2 and ai<len(acts) and acts[ai] in slot and E.landed(acts[ai]):
                st.append(v_consume(acts[ai][1])); ai+=1; c+=1
            for s_ in st: v_mfma(*s_)
    N0=pace[0]
    for i,tag in enumerate(seq):
        N=pace[i%npace]
        if i>=N0: E.wait_n(N-1)
        issue(tag)
        if i==N0-1: setup1()
        if i==100: reserve[0]=True
        do_actions(i)
        if i==170: tail_setup_a()
        if i==172: tail_setup_b()
        if i>=N0: E.safe()
    while ai<len(acts):
        a=acts[ai]; assert a[0]=='V'
        st=v_consume(a[1]); E.wait_tag(a); v_mfma(*st); ai+=1
    stamp(5)
    E(f"ds_write_b128 v{OA}, v[{ACC}:{ACC+3}] offset:{L_O}"); E(f"ds_write_b128 v{OA}, v[{ACC+4}:{ACC+7}] offset:{L_O+16}")
    E("s_waitcnt lgkmcnt(0)"); E("s_barrier")
    stamp(6)
    E(f"ds_read_b64 v[{WT}:{WT+1}], v228 offset:{L_W}")
    poll([f"buffer_load_dwordx4 v[{U0}:{U0+3}], v{PA}, s[16:19], s31 offen sc1", f"buffer_load_dwordx4 v[{U1}:{U1+3}], v{PA}, s[16:19], s31 offen offset:512 sc1"],[U0,U1],CT,8,True)
    stamp(7)
    for k in range(4): E(f"v_mul_f32 v{O+k}, v{WT}, v{U0+k}")
    for k in range(4): E(f"v_fmac_f32 v{O+k}, v{WT+1}, v{U1+k}")
    for m in ("quad_perm:[1,0,3,2]","quad_perm:[2,3,0,1]","row_ror:8"):
        for k in range(4): E(f"v_add_f32_dpp v{O+k}, v{O+k}, v{O+k} {m} {DPP}")
    E(f"v_cvt_pk_bf16_f32 v{PK}, v{O}, v{O+1}"); E(f"v_cvt_pk_bf16_f32 v{PK+1}, v{O+2}, v{O+3}")
    for j in range(4):
        buildA(S+4*j, PK+(j>>1), j&1, SEL)
        if j>0:
            r=RING0+4*slot[('W',j-1)]
            E(f"v_mfma_f32_16x16x32_bf16 v[{ACC}:{ACC+3}], v[{S+4*j-4}:{S+4*j-1}], v[{r}:{r+3}], "+("0" if j==1 else f"v[{ACC}:{ACC+3}]"))
    r=RING0+4*slot[('W',3)]
    E(f"v_mfma_f32_16x16x32_bf16 v[{ACC}:{ACC+3}], v[{S+12}:{S+15}], v[{r}:{r+3}], v[{ACC}:{ACC+3}]")
    E("s_cmp_eq_u32 s3, 0"); E("s_cbranch_scc1 L_s0")
    h=list(E.hist)
    E(f"ds_write_b128 v{vK}, v[{ACC}:{ACC+3}] offset:{L_Y}"); E("s_waitcnt lgkmcnt(0)"); E("s_barrier")
    finish()
    E.label("L_s0"); E.hist=h
    E("s_barrier")
    for k in range(3): E(f"ds_read_b128 v[{S+4*k}:{S+4*k+3}], v{vV} offset:{L_Y+1024*(k+1)}")
    for k in range(3):
        E(f"s_waitcnt lgkmcnt({2-k})")
        for c in range(4): E(f"v_add_f32 v{ACC+c}, v{ACC+c}, v{S+4*k+c}")
    tag_insert(ACC,MH)
    E(f"buffer_store_dwordx4 v[{ACC}:{ACC+3}], v{YA}, s[16:19], s32 offen sc1")
    stamp(8)
    finish()

    E.label("L_h0")
    E("s_and_b32 s29, s2, 7"); E("s_lshr_b32 s30, s2, 4"); E("s_lshl_b32 s30, s30, 3"); E("s_or_b32 s29, s29, s30")
    E("s_and_b32 s31, s29, 3")
    E("v_lshlrev_b32 v2, 4, v0"); E("v_lshrrev_b32 v3, 4, v0"); E("v_and_b32 v1, 15, v0"); E("v_lshlrev_b32 v1, 4, v1")
    E("s_bitcmp1_b32 s2, 3"); E("s_cbranch_scc1 L_h0f")
    E("s_lshr_b32 s32, s29, 2"); E("s_lshl_b32 s28, s32, 8"); E("s_lshl_b32 s30, s31, 20"); E("s_add_u32 s28, s28, s30")
    E("s_mov_b32 s33, 8192"); E("s_mov_b32 s22, 0x400000"); E("v_lshl_add_u32 v1, v3, 18, v1")
    E("s_lshl_b32 s34, s32, 11"); E("s_lshl_b32 s30, s31, 9"); E("s_add_u32 s34, s34, s30"); E(f"s_add_u32 s34, s34, {WS_QP}")
    E("s_mov_b32 s20, s4"); E("s_mov_b32 s21, s5")
    epoch_load(78)
    E("buffer_load_dwordx4 v[4:7], v2, s[24:27], 0 offen"); E("buffer_load_dwordx4 v[8:11], v2, s[24:27], 0 offen offset:1024")
    for j in range(32):
        E(f"buffer_load_dwordx4 v[{128+4*j}:{131+4*j}], v1, s[20:23], s28 offen nt"); E("s_add_u32 s28, s28, s33")
    E("v_and_b32 v76, 15, v0"); E("v_lshlrev_b32 v76, 4, v76"); E("v_lshrrev_b32 v28, 5, v0"); E("v_lshl_add_u32 v76, v28, 8, v76")
    E("v_bfe_u32 v28, v0, 4, 1"); E("v_lshl_add_u32 v76, v28, 16, v76")
    E("s_mov_b32 s35, 0")
    E("s_branch L_h0c"); E.reset()
    E.safe()
    E.label("L_h0f")
    E("s_cmp_ge_u32 s29, 56"); E("s_cselect_b32 s30, 56, 0"); E("s_cselect_b32 s35, 1024, 0"); E("s_sub_u32 s32, s29, s30"); E("s_lshr_b32 s32, s32, 2")
    E("s_lshl_b32 s28, s32, 8"); E(f"s_mul_i32 s30, s31, {128*3584}"); E("s_add_u32 s28, s28, s30")
    E("s_mov_b32 s33, 3584"); E(f"s_mov_b32 s22, {512*3584}"); E(f"v_mul_u32_u24 v3, {32*3584}, v3"); E("v_add_u32 v1, v1, v3")
    E("s_lshl_b32 s34, s32, 13"); E("s_add_u32 s34, s34, s35"); E("s_lshl_b32 s30, s31, 7"); E("s_add_u32 s34, s34, s30"); E(f"s_add_u32 s34, s34, {WS_GP}")
    E("s_cmp_ge_u32 s29, 56"); E("s_cselect_b32 s20, s54, s52"); E("s_cselect_b32 s21, s55, s53")
    epoch_load(78)
    E("buffer_load_dwordx4 v[4:7], v2, s[24:27], 0 offen"); E("buffer_load_dwordx4 v[8:11], v2, s[24:27], 0 offen offset:1024")
    E("v_and_b32 v76, 3, v0"); E("v_lshlrev_b32 v76, 4, v76"); E("v_lshrrev_b32 v28, 5, v0"); E("v_lshl_add_u32 v76, v28, 6, v76")
    E("v_bfe_u32 v28, v0, 4, 1"); E("v_lshl_add_u32 v76, v28, 9, v76"); E("v_bfe_u32 v28, v0, 2, 2"); E("v_lshl_add_u32 v76, v28, 11, v76")
    E("s_mov_b32 s35, 1")
    E.label("L_h0c"); E.reset()
    E("s_cmp_eq_u32 s35, 0"); E("s_cbranch_scc1 L_h0d")
    E("s_waitcnt vmcnt(0)")
    E("s_cmp_ge_u32 s29, 112"); E("s_cbranch_scc1 L_h0skip")
    E.label("L_h0d")
    E.safe()
    selectors(40,28)
    E("s_waitcnt vmcnt(32)")
    stamp(1)
    for b in range(2):
        for k in range(4):
            E(f"v_lshlrev_b32 v{12+8*b+2*k}, 16, v{4+4*b+k}"); E(f"v_and_b32 v{13+8*b+2*k}, 0xffff0000, v{4+4*b+k}")
    def red2(a,c,t):
        E(f"v_permlane32_swap_b32 v{a}, v{c}"); E(f"v_add_f32 v{a}, v{a}, v{c}")
        E(f"v_mov_b32 v{t}, v{a}"); E(f"v_permlane16_swap_b32 v{t}, v{a}"); E(f"v_add_f32 v{a}, v{a}, v{t}")
        for m in (1,2,4,8): E(f"v_add_f32_dpp v{a}, v{a}, v{a} row_ror:{m} {DPP}")
        E(f"v_mul_f32 v{a}, 0x3b000000, v{a}")
    for b in range(2):
        E(f"v_add_f32 v{28+b}, v{12+8*b}, v{13+8*b}")
    for k in range(2,8):
        for b in range(2): E(f"v_add_f32 v{28+b}, v{28+b}, v{12+8*b+k}")
    red2(28,29,30)
    E("v_readlane_b32 s52, v28, 0"); E("v_readlane_b32 s53, v28, 32")
    rbf(31,28)
    E.safe()
    for k in range(8):
        for b in range(2):
            E(f"v_subrev_f32 v{32+b}, s{52+b}, v{12+8*b+k}")
            if k==0: E(f"v_mul_f32 v{34+b}, v{32+b}, v{32+b}")
            else: E(f"v_fmac_f32 v{34+b}, v{32+b}, v{32+b}")
    red2(34,35,30)
    rbf(34,34); E("v_add_f32 v34, 0x3727c5ac, v34"); rbf(34,34); E("v_sqrt_f32 v34, v34"); rbf(34,34); E("v_rcp_f32 v34, v34")
    E("v_readlane_b32 s54, v31, 0"); E("v_readlane_b32 s55, v31, 32"); E("v_readlane_b32 s56, v34, 0"); E("v_readlane_b32 s57, v34, 32")
    E.safe()
    for b in range(2):
        for k in range(8): E(f"v_subrev_f32 v{12+8*b+k}, s{54+b}, v{12+8*b+k}")
        for k in range(4): E(f"v_cvt_pk_bf16_f32 v{4+4*b+k}, v{12+8*b+2*k}, v{13+8*b+2*k}")
        for k in range(4):
            E(f"v_lshlrev_b32 v{12+8*b+2*k}, 16, v{4+4*b+k}"); E(f"v_and_b32 v{13+8*b+2*k}, 0xffff0000, v{4+4*b+k}")
        for k in range(8): E(f"v_mul_f32 v{12+8*b+k}, s{56+b}, v{12+8*b+k}")
        for k in range(4): E(f"v_cvt_pk_bf16_f32 v{4+4*b+k}, v{12+8*b+2*k}, v{13+8*b+2*k}")
        E(f"ds_write_b128 v2, v[{4+4*b}:{7+4*b}] offset:{L_XN+1024*b}")
        E.safe()
    E("v_bfe_u32 v28, v0, 2, 1"); E("v_lshlrev_b32 v28, 10, v28"); E("v_lshrrev_b32 v29, 4, v0"); E("v_lshl_add_u32 v28, v29, 6, v28")
    E("s_lshl_b32 s30, s31, 8"); E("v_add_u32 v28, s30, v28")
    for k in range(4): E(f"ds_read_b128 v[{48+4*k}:{51+4*k}], v28 offset:{L_XN+16*k}")
    E("v_mov_b32 v77, 0xfffffff0")
    tag_setup(4,78)
    E("s_waitcnt lgkmcnt(0)")
    stamp(2)
    E("s_cmp_eq_u32 s35, 0"); E("s_cbranch_scc1 L_h0m")
    for j in range(32):
        if j>=hpace: E(f"s_waitcnt vmcnt({hpace-1})")
        E(f"buffer_load_dwordx4 v[{128+4*j}:{131+4*j}], v1, s[20:23], s28 offen nt"); E("s_add_u32 s28, s28, s33")
        if j%4==3: E.safe()
    E.label("L_h0m"); E.reset()
    for j in range(32):
        a=64+4*(j&1)
        buildA(a, 48+(j>>1), j&1, 40)
        E(f"s_waitcnt vmcnt({31-j})")
        E(f"v_mfma_f32_16x16x32_bf16 v[72:75], v[{a}:{a+3}], v[{128+4*j}:{131+4*j}], "+("0" if j==0 else "v[72:75]"))
        E.safe()
    tag_insert(72,77)
    E("buffer_store_dwordx4 v[72:75], v76, s[16:19], s34 offen sc1")
    stamp(3)
    E("s_branch L_red"); E.reset()
    E.label("L_h0skip")
    tag_setup(4,78)
    E("s_branch L_red"); E.reset()
    E.safe()
    E.label("L_h1")
    epoch_load(44)
    E("s_lshr_b32 s29, s2, 4"); E("s_lshl_b32 s28, s29, 13"); E(f"s_add_u32 s28, s28, {WS_QP}")
    E("v_and_b32 v3, 3, v0"); E("v_lshlrev_b32 v3, 4, v3"); E("v_lshrrev_b32 v1, 2, v0"); E("v_lshl_add_u32 v1, v1, 9, v3")
    E("v_lshrrev_b32 v2, 4, v0"); E("v_lshl_add_u32 v2, v2, 6, v3"); E("v_bfe_u32 v3, v0, 2, 2"); E("v_lshl_add_u32 v2, v3, 11, v2")
    E("s_waitcnt vmcnt(0)"); tag_setup(4,44)
    poll(["buffer_load_dwordx4 v[8:11], v1, s[16:19], s28 offen offset:256 sc1"],[8],4,4,False,sleep=8)
    stamp(1)
    E.safe()
    poll([f"buffer_load_dwordx4 v[{8+4*k}:{11+4*k}], v2, s[16:19], s28 offen offset:{k*256} sc1" for k in range(8)],[8+4*k for k in range(8)],4,4,False,sleep=4)
    E.safe()
    for rho in range(1,4):
        for c in range(8): E(f"v_add_f32 v{8+c}, v{8+c}, v{8+8*rho+c}")
    for c in range(4): E(f"v_cvt_pk_bf16_f32 v{40+c}, v{8+2*c}, v{9+2*c}")
    E("v_lshlrev_b32 v3, 4, v0"); E(f"ds_write_b128 v3, v[40:43] offset:{L_Q}")
    E("v_mov_b32 v4, 0"); E("v_mov_b32 v6, 1"); E("v_mov_b32 v7, s36"); E("s_waitcnt lgkmcnt(0)"); E(f"ds_write_b64 v4, v[6:7] offset:{L_FLAG}")
    stamp(2)
    E.label("L_red"); E.reset()
    tag_bits(8)
    E("s_sub_u32 s29, s3, 4"); E("s_lshl_b32 s30, s29, 1")
    E("v_lshrrev_b32 v1, 5, v0"); E("v_add_u32 v1, s30, v1")
    E("v_lshlrev_b32 v2, 3, v1")
    E(f"s_mov_b32 s50, {SPIN*4}")
    E.label("L_mlw")
    for s_ in range(4): E(f"ds_read_b64 v[{8+2*s_}:{9+2*s_}], v2 offset:{L_ML+32*s_}")
    E("s_waitcnt lgkmcnt(0)")
    E("v_min_u32 v4, v9, v11"); E("v_min3_u32 v4, v4, v13, v15"); E("v_cmp_eq_u32 vcc, 0, v4")
    E("s_cbranch_vccz L_mlx")
    E("s_sleep 8"); E("s_sub_u32 s50, s50, 1"); E("s_cbranch_scc0 L_mlw")
    E.label("L_mlx")
    E.safe()
    stamp(4)
    E("v_max_f32 v16, v8, v10"); E("v_max3_f32 v16, v16, v12, v14")
    for s_ in range(4): E(f"v_sub_f32 v{20+s_}, v{8+2*s_}, v16")
    for s_ in range(4): E(f"v_mul_f32 v{20+s_}, {hex(LOG2E)}, v{20+s_}")
    for s_ in range(4): E(f"v_exp_f32 v{20+s_}, v{20+s_}")
    E("v_mul_f32 v17, v20, v9")
    for s_ in range(1,4): E(f"v_fmac_f32 v17, v{20+s_}, v{9+2*s_}")
    E("v_mov_b32 v18, 0"); E("v_mov_b32 v19, 0"); E("v_mov_b32 v24, 0xffffff00")
    tag_insert(16,24)
    E("s_bfe_u32 s31, s2, 0x30004"); E("s_lshr_b32 s32, s2, 7"); E("s_and_b32 s33, s2, 15")
    E("s_lshl_b32 s34, s31, 11"); E("s_lshl_b32 s35, s32, 8"); E("s_add_u32 s34, s34, s35"); E("s_lshl_b32 s35, s33, 4"); E("s_add_u32 s34, s34, s35"); E(f"s_add_u32 s34, s34, {WS_ML}")
    E("v_lshlrev_b32 v3, 9, v1")
    E("s_mov_b32 exec_lo, 1"); E("s_mov_b32 exec_hi, 1")
    E("buffer_store_dwordx4 v[16:19], v3, s[16:19], s34 offen sc1")
    E("s_mov_b64 exec, -1")
    E.safe()
    E("v_and_b32 v4, 3, v0"); E("v_lshlrev_b32 v4, 4, v4"); E("v_bfe_u32 v5, v0, 2, 3"); E("v_lshl_add_u32 v4, v5, 11, v4"); E("v_lshl_add_u32 v25, v1, 14, v4")
    E("s_lshl_b32 s34, s31, 16"); E("s_lshl_b32 s35, s32, 10"); E("s_add_u32 s34, s34, s35"); E("s_lshl_b32 s35, s33, 6"); E("s_add_u32 s34, s34, s35"); E(f"s_add_u32 s34, s34, {WS_OP}")
    E("v_lshlrev_b32 v26, 4, v0"); E("s_lshl_b32 s35, s29, 10"); E("v_add_u32 v26, s35, v26")
    E("s_cmp_eq_u32 s3, 4"); E("s_cbranch_scc1 L_redw")
    E("s_lshr_b32 s28, s2, 3"); E("s_lshl_b32 s28, s28, 9"); E(f"s_add_u32 s28, s28, {WS_ML}")
    E("v_and_b32 v3, 31, v0"); E("v_lshlrev_b32 v3, 4, v3")
    poll(["buffer_load_dwordx4 v[8:11], v3, s[16:19], s28 offen sc1"],[8],4,8,False,sleep=8)
    E.safe()
    E("v_mov_b32 v12, v8")
    for m in (1,2,4,8): E(f"v_max_f32_dpp v12, v12, v12 row_ror:{m} {DPP}")
    E("v_sub_f32 v8, v8, v12"); E(f"v_mul_f32 v8, {hex(LOG2E)}, v8"); E("v_exp_f32 v8, v8"); E("v_mul_f32 v12, v8, v9")
    for m in (1,2,4,8): E(f"v_add_f32_dpp v12, v12, v12 row_ror:{m} {DPP}")
    E("v_rcp_f32 v12, v12"); E("v_mul_f32 v8, v8, v12")
    E("v_and_b32 v4, 3, v0"); E("v_lshlrev_b32 v4, 3, v4"); E("v_bfe_u32 v5, v0, 2, 1"); E("v_lshl_add_u32 v4, v5, 6, v4")
    E("v_bfe_u32 v5, v0, 4, 1"); E("v_lshl_add_u32 v4, v5, 5, v4"); E("v_bfe_u32 v5, v0, 3, 1"); E("v_lshl_add_u32 v4, v5, 2, v4")
    E(f"ds_write_b32 v4, v8 offset:{L_W}")
    E("s_waitcnt lgkmcnt(0)")
    E.label("L_redw"); E.reset()
    stamp(5)
    E.safe()
    E("s_setprio 3")
    E("s_barrier")
    for s_ in range(4): E(f"ds_read_b128 v[{32+4*s_}:{35+4*s_}], v26 offset:{L_O+2048*s_}")
    for s_ in range(4):
        E(f"s_waitcnt lgkmcnt({3-s_})")
        for c in range(4): E((f"v_mul_f32 v{28+c}, v20, v{32+c}") if s_==0 else f"v_fmac_f32 v{28+c}, v{20+s_}, v{32+4*s_+c}")
    tag_insert(28,24)
    E("buffer_store_dwordx4 v[28:31], v25, s[16:19], s34 offen sc1")
    stamp(6)
    finish()
    E.safe()
    E.label("L_h2")
    E("s_mov_b32 s20, s56"); E("s_mov_b32 s21, s57"); E(f"s_mov_b32 s22, {1792*1024}")
    E("s_cmp_ge_u32 s2, 224"); E("s_cbranch_scc1 L_fin")
    epoch_load(50)
    E("s_waitcnt vmcnt(0)")
    tag_setup(4,50)
    selectors(40,4)
    E.safe()
    E("s_lshr_b32 s29, s2, 2"); E("s_and_b32 s30, s2, 3")
    E("s_lshl_b32 s28, s29, 11"); E(f"s_add_u32 s28, s28, {WS_GP}")
    E("v_and_b32 v1, 15, v0"); E("v_lshrrev_b32 v3, 4, v0"); E("v_lshlrev_b32 v2, 4, v1"); E("v_lshlrev_b32 v1, 7, v1"); E("v_lshl_add_u32 v1, v3, 4, v1")
    E("v_lshl_add_u32 v2, v3, 13, v2"); E("v_add_u32 v48, 4096, v2")
    E("s_lshl_b32 s31, s29, 15"); E("s_lshl_b32 s32, s30, 8"); E("s_add_u32 s31, s31, s32")
    poll(["buffer_load_dwordx4 v[8:11], v1, s[16:19], s28 offen sc1","buffer_load_dwordx4 v[12:15], v1, s[16:19], s28 offen offset:64 sc1"],[8,12],4,4,False,sleep=64)
    stamp(1)
    for j in range(8): E(f"buffer_load_dwordx4 v[{64+4*j}:{67+4*j}], v{2 if j<4 else 48}, s[20:23], s31 offen offset:{(j&3)*1024} nt",('d',j))
    E.safe()
    for m in ("quad_perm:[1,0,3,2]","quad_perm:[2,3,0,1]"):
        for c in range(8): E(f"v_add_f32_dpp v{8+c}, v{8+c}, v{8+c} {m} {DPP}")
    for c in range(8): rbf(8+c,8+c)
    E.safe()
    E("s_mov_b32 s33, 0x3d372713")
    for c in range(8): E(f"v_mul_f32 v{16+c}, v{8+c}, v{8+c}")
    for c in range(8): E(f"v_mul_f32 v{16+c}, v{16+c}, v{8+c}")
    for c in range(8): E(f"v_fma_f32 v{16+c}, v{16+c}, s33, v{8+c}")
    for c in range(8): E(f"v_mul_f32 v{16+c}, 0xc0135761, v{16+c}")
    E.safe()
    for c in range(8): E(f"v_exp_f32 v{16+c}, v{16+c}")
    for c in range(8): E(f"v_add_f32 v{16+c}, 1.0, v{16+c}")
    for c in range(8): E(f"v_rcp_f32 v{16+c}, v{16+c}")
    for c in range(8): E(f"v_mul_f32 v{16+c}, v{16+c}, v{8+c}")
    E.safe()
    for c in range(8): rbf(16+c,16+c)
    E("s_mov_b32 vcc_lo, 0xff00ff00"); E("s_mov_b32 vcc_hi, 0xff00ff00")
    for c in range(8): E(f"v_cndmask_b32 v{8+c}, v{16+c}, v{8+c}, vcc")
    E.safe()
    for c in range(8): E(f"v_mul_f32_dpp v{16+c}, v{8+c}, v{8+c} row_ror:8 {DPP}")
    for c in range(4): E(f"v_cvt_pk_bf16_f32 v{24+c}, v{16+2*c}, v{17+2*c}")
    tag_bits(8); E("v_mov_b32 v49, 0xffffff00")
    E("s_lshl_b32 s32, s30, 16"); E("s_lshl_b32 s33, s29, 6"); E("s_add_u32 s32, s32, s33"); E(f"s_add_u32 s32, s32, {WS_FP}")
    E("v_lshrrev_b32 v3, 2, v0"); E("v_lshlrev_b32 v3, 12, v3"); E("v_and_b32 v4, 3, v0"); E("v_lshl_add_u32 v3, v4, 4, v3")
    for j in range(8):
        a=28+4*(j&1); buildA(a,24+(j>>1),j&1,40); E.wait_tag(('d',j))
        E(f"v_mfma_f32_16x16x32_bf16 v[36:39], v[{a}:{a+3}], v[{64+4*j}:{67+4*j}], "+("0" if j==0 else "v[36:39]"))
        E.safe()
    tag_insert(36,49)
    E("buffer_store_dwordx4 v[36:39], v3, s[16:19], s32 offen sc1")
    stamp(2)
    E.label("L_fin")
    finish()
    E.safe()
    E.label("L_h3")
    E("s_mov_b32 s20, s58"); E("s_mov_b32 s21, s59"); E("s_mov_b32 s22, 2048")
    if warm:
        E("s_getpc_b64 s[4:5]"); E.label("L_pc")
        E(f"s_sub_u32 s4, s4, L_pc-{KN}"); E("s_subb_u32 s5, s5, 0")
        E("s_bfe_u32 s29, s2, 0x20003"); E("s_lshl_b32 s29, s29, 13"); E("v_lshlrev_b32 v1, 7, v0"); E("v_add_u32 v1, s29, v1")
        E(f"v_min_u32 v1, L_end-{KN}, v1")
        E("global_load_dword v2, v1, s[4:5]")
    E("s_waitcnt vmcnt(0)"); E.vm=[]
    if warm:
        E("s_mov_b32 s51, 1"); E("s_branch L_pad0")
        E.label("L_padret"); E("s_mov_b32 s51, 0")
    stamp(1)
    E("s_cmp_ge_u32 s2, 64"); E("s_cbranch_scc1 L_fin")
    epoch_load(50)
    E("s_waitcnt vmcnt(0)")
    tag_setup(8,50)
    E("s_and_b32 s29, s2, 3"); E("s_lshr_b32 s30, s2, 2")
    E("s_lshl_b32 s28, s29, 16"); E("s_lshl_b32 s31, s30, 12"); E("s_add_u32 s28, s28, s31"); E(f"s_add_u32 s31, s28, {WS_YP}"); E(f"s_add_u32 s28, s28, {WS_FP}")
    E("v_lshlrev_b32 v1, 4, v0")
    E("s_bfe_u32 s32, s30, 0x10002"); E("s_lshl_b32 s32, s32, 10"); E("s_lshl_b32 s33, s29, 8"); E("s_add_u32 s32, s32, s33")
    E("s_and_b32 s33, s30, 3"); E("s_lshl_b32 s33, s33, 6"); E("s_add_u32 s32, s32, s33"); E("s_lshr_b32 s33, s30, 3"); E("s_lshl_b32 s33, s33, 3"); E("s_add_u32 s32, s32, s33")
    E("v_and_b32 v2, 3, v0"); E("v_lshlrev_b32 v2, 4, v2"); E("v_lshrrev_b32 v3, 4, v0"); E("v_lshl_add_u32 v2, v3, 1, v2")
    E("buffer_load_ushort v30, v2, s[24:27], s32 offen")
    E("v_and_b32 v33, 31, v0"); E("v_lshlrev_b32 v33, 4, v33")
    E.safe()
    def fred():
        for z in range(1,4):
            for c in range(4): E(f"v_add_f32 v{8+c}, v{8+c}, v{8+4*z+c}")
        E("v_permlane32_swap_b32 v8, v10"); E("v_permlane32_swap_b32 v9, v11")
        E("v_add_f32 v8, v8, v10"); E("v_add_f32 v9, v9, v11")
        E("v_permlane16_swap_b32 v8, v9"); E("v_add_f32 v8, v8, v9")
        E(f"v_add_f32_dpp v8, v8, v8 row_ror:4 {DPP}"); E(f"v_add_f32_dpp v8, v8, v8 row_ror:8 {DPP}")
    poll([f"buffer_load_dwordx4 v[{8+4*z}:{11+4*z}], v{1 if z<3 else 33}, s[16:19], s28 offen offset:{z*1024} sc1" for z in range(4)],[8,12,16,20],4,8,True,sleep=64)
    E.safe()
    E("s_mov_b32 exec_lo, 0")
    for c in range(4): E(f"v_mov_b32 v{20+c}, 0")
    E("s_mov_b64 exec, -1")
    fred(); rbf(31,8); E("v_lshlrev_b32 v30, 16, v30"); E("v_mov_b32 v32, s36"); E("v_mov_b32 v34, 0")
    stamp(2)
    E.safe()
    E("s_setprio 3")
    E("s_barrier"); E("s_barrier")
    stamp(3)
    poll([f"buffer_load_dwordx4 v[{8+4*z}:{11+4*z}], v1, s[16:19], s31 offen offset:{z*1024} sc1" for z in range(4)],[8,12,16,20],4,8,True)
    stamp(4)
    fred(); rbf(8,8); E("v_add_f32 v8, v8, v30"); rbf(8,8); E("v_add_f32 v8, v8, v31"); E("v_cvt_pk_bf16_f32 v8, v8, v8")
    E("s_mov_b32 exec_lo, 0x000f000f"); E("s_mov_b32 exec_hi, 0x000f000f")
    E("buffer_store_short v8, v2, s[20:23], s32 offen")
    E("s_cmp_lg_u32 s2, 0"); E("s_cbranch_scc1 L_fin2")
    E("s_mov_b64 exec, 1")
    E(f"buffer_store_dword v32, v34, s[16:19], 0 offen offset:{WS_EPOCH} sc1")
    E.label("L_fin2")
    stamp(5)
    finish()
    if dbg:
        E.label("L_dbg")
        E("s_memrealtime s[78:79]"); E("s_getreg_b32 s80, hwreg(HW_REG_XCC_ID)")
        E("s_waitcnt lgkmcnt(0)")
        E("s_mov_b64 exec, -1"); E("v_mov_b32 v1, 0")
        for k in range(11): E(f"v_writelane_b32 v1, s{60+2*k}, {k}")
        E("s_lshl_b32 s29, s2, 3"); E("s_add_u32 s29, s29, s3"); E("s_lshl_b32 s29, s29, 6"); E(f"s_add_u32 s29, s29, {WS_DBG}")
        E("v_mbcnt_lo_u32_b32 v2, -1, 0"); E("v_lshlrev_b32 v2, 2, v2"); E("s_mov_b64 exec, 0xffff")
        E("buffer_store_dword v1, v2, s[16:19], s29 offen")
    E.label("L_end")
    E("s_endpgm")
    return E

HEAD=open(os.path.join(os.path.dirname(os.path.abspath(__file__)),"head.txt")).read()
def wrap(body):
    return HEAD+f"""; @launch grid=(256,1,1) block=(512,1,1) lds={LDS_SIZE}
.amdgcn_target "amdgcn-amd-amdhsa--gfx950"
.text
.globl {KN}
.p2align 12
.p2align 8
.type {KN},@function
{KN}:
"""+body+f"""
.section .rodata,"a"
.p2align 6
.amdhsa_kernel {KN}
  .amdhsa_next_free_vgpr 256
  .amdhsa_next_free_sgpr 96
  .amdhsa_accum_offset 256
  .amdhsa_group_segment_fixed_size 0
  .amdhsa_kernarg_size 96
  .amdhsa_user_sgpr_count 2
  .amdhsa_user_sgpr_kernarg_segment_ptr 1
  .amdhsa_system_sgpr_workgroup_id_x 1
.end_amdhsa_kernel
"""
ENTRY_OFF=0x300
def build_text(**kw):
    E=gen(**kw); warm=kw.get("warm",True)
    lines=E.out
    if not warm:
        return wrap("\n".join(l for l in lines if not l.startswith("@SAFE")))
    t="\n".join((f"SAFE{l[5:]}:" if l.startswith("@SAFE") else l) for l in lines)+"\nL_pad0:\n"
    tmp=f"gen_p1_{os.getpid()}.s"; open(tmp,"w").write(wrap(t))
    subprocess.run(["clang","-x","assembler","-target","amdgcn-amd-amdhsa","-mcpu=gfx950","-c",tmp,"-o",tmp+".o"],check=True)
    nm=subprocess.run(["llvm-readelf","-s",tmp+".o"],capture_output=True,text=True).stdout
    addr={}
    for ln in nm.splitlines():
        p=ln.split()
        if len(p)>=8 and p[7].startswith("SAFE"): addr[int(p[7][4:])]=int(p[1],16)
    chosen=[]; nxt=1024+ (ENTRY_OFF//1024)*1024
    for k in sorted(addr):
        a=addr[k]+ENTRY_OFF+8*len(chosen)
        if a>=nxt:
            chosen.append(k); nxt=(a//1024+1)*1024
    out=[]
    for l in lines:
        if l.startswith("@SAFE"):
            k=int(l[5:])
            if k in chosen:
                i=chosen.index(k); tgt=f"L_pad{i+1}" if i+1<len(chosen) else "L_padret"
                out.append(f"L_pad{i}:"); out.append("    s_cmp_eq_u32 s51, 1"); out.append(f"    s_cbranch_scc1 {tgt}")
        else: out.append(l)
    return wrap("\n".join(out))
if __name__=="__main__":
    kw=eval("dict("+(sys.argv[2] if len(sys.argv)>2 else "")+")")
    open(sys.argv[1],"w").write(build_text(**kw))
```

```python
import sys, subprocess, re, os
sys.path.insert(0, os.path.dirname(os.path.abspath(__file__)))
from emit import Em
KN="parallel_sum__gqa_block_cached__geglu_ffn__decode_kernel"
DPP="row_mask:0xf bank_mask:0xf"
WS_EPOCH=0; WS_QP=0x10000; WS_GP=0x30000; WS_ML=0x50000; WS_OP=0x80000; WS_YP=0x100000; WS_FP=0x140000; WS_DBG=0x180000; WS_SIZE=0x200000
L_FLAG=0; L_ML=64; L_W=256; L_Q=1024; L_XN=2048; L_O=4096; L_Y=12288; LDS_SIZE=16384
SPIN=0x4000
LOG2E=0x3fb8aa3b

def gen(pace=(5,), qstep=44, dbg=False, warm=True, cu=2, hpace=8, probe=None):
    E=Em()
    nst=[0]
    def stamp(k):
        if dbg: E(f"s_memrealtime s[{60+2*k}:{61+2*k}]")
    def finish():
        if dbg: E("s_branch L_dbg")
        else: E("s_endpgm")
        E.reset()
    def epoch_load(v):
        E(f"v_mov_b32 v{v}, 0"); E(f"buffer_load_dword v{v}, v{v}, s[16:19], 0 offen offset:{WS_EPOCH} sc1")
    def tag_setup(bits, v=None):
        if v is not None:
            E(f"v_readfirstlane_b32 s36, v{v}"); E("s_add_u32 s36, s36, 0x01010101")
        w = bits<<16
        for k in range(4): E(f"s_bfe_u32 s{37+k}, s36, {hex(w|(8*k))}")
    def tag_bits(bits):
        w = bits<<16
        for k in range(4): E(f"s_bfe_u32 s{37+k}, s36, {hex(w|(8*k))}")
    def tag_insert(r, vmask):
        for k in range(4): E(f"v_and_or_b32 v{r+k}, v{r+k}, v{vmask}, s{37+k}")
    def check(units, t, bits):
        for n,a in enumerate(units):
            for k in range(4): E(f"v_xor_b32 v{a+k}, s{37+k}, v{a+k}")
            if n==0: E(f"v_or_b32 v{t}, v{a}, v{a+1}")
            else: E(f"v_or3_b32 v{t}, v{a}, v{a+1}, v{t}")
            E(f"v_or3_b32 v{t}, v{a+2}, v{a+3}, v{t}")
        E(f"v_and_b32 v{t}, {hex((1<<bits)-1)}, v{t}")
        E(f"v_cmp_ne_u32 vcc, 0, v{t}")
    pollid=[0]
    def poll(loads, units, t, bits, masked, sleep=0, pre=None):
        k=pollid[0]; pollid[0]+=1
        E(f"s_mov_b32 s50, {SPIN}")
        E.label(f"L_poll{k}")
        for l in loads: E(l)
        if pre: pre()
        E("s_waitcnt vmcnt(0) lgkmcnt(0)"); E.vm=[]
        check(units,t,bits)
        E(f"s_cbranch_vccz L_pollx{k}")
        if masked: E("s_mov_b64 exec, vcc")
        if sleep: E(f"s_sleep {sleep}")
        E("s_sub_u32 s50, s50, 1"); E(f"s_cbranch_scc0 L_poll{k}")
        E.label(f"L_pollx{k}")
        if masked: E("s_mov_b64 exec, -1")
    def selectors(sel, t):
        E(f"v_and_b32 v{t}, 1, v0"); E(f"v_cmp_eq_u32 vcc, 1, v{t}")
        E(f"v_mov_b32 v{t+1}, 0x0c0c0100"); E(f"v_mov_b32 v{t+2}, 0x01000c0c"); E(f"v_cndmask_b32 v{t+1}, v{t+1}, v{t+2}, vcc")
        E(f"v_mov_b32 v{t+2}, 0x0c0c0302"); E(f"v_mov_b32 v{t+3}, 0x03020c0c"); E(f"v_cndmask_b32 v{t+2}, v{t+2}, v{t+3}, vcc")
        E(f"v_bfe_u32 v{t}, v0, 3, 1"); E(f"v_bfe_u32 v{t+3}, v0, 1, 1"); E(f"v_lshl_add_u32 v{t}, v{t}, 1, v{t+3}")
        E(f"v_mov_b32 v{t+3}, 0x0c0c0c0c")
        for k in range(4):
            E(f"v_cmp_eq_u32 vcc, {k}, v{t}")
            E(f"v_cndmask_b32 v{sel+2*k}, v{t+3}, v{t+1}, vcc"); E(f"v_cndmask_b32 v{sel+2*k+1}, v{t+3}, v{t+2}, vcc")
    def buildA(dst, pk, par, sel):
        for k in range(4): E(f"v_perm_b32 v{dst+k}, v{pk}, v{pk}, v{sel+2*k+par}")
    def rbf(d, s):
        E(f"v_cvt_pk_bf16_f32 v{d}, v{s}, v{s}"); E(f"v_and_b32 v{d}, 0xffff0000, v{d}")
    def srd(base, size):
        E(f"s_mov_b32 s{base+2}, {hex(size)}"); E(f"s_mov_b32 s{base+3}, 0x20000")

    E("s_load_dwordx2 s[8:9], s[0:1], 8")
    E("s_load_dwordx2 s[16:17], s[0:1], 88")
    stamp(0)
    E("v_lshrrev_b32 v3, 6, v0")
    E("s_cmp_ge_u32 s2, 256"); E("s_cbranch_scc1 L_end")
    E("v_readfirstlane_b32 s3, v3")
    E("v_and_b32 v0, 63, v0")
    E("s_mov_b32 s51, 0")
    srd(16, WS_SIZE)
    E("s_cmp_lt_u32 s3, 4"); E("s_cbranch_scc1 L_stream")
    E("v_mov_b32 v4, 0"); E("v_lshlrev_b32 v2, 2, v0"); E(f"ds_write_b32 v2, v4 offset:0")
    E("s_load_dwordx2 s[24:25], s[0:1], 0"); E("s_load_dwordx2 s[4:5], s[0:1], 24"); E("s_load_dwordx4 s[52:55], s[0:1], 48"); E("s_load_dwordx4 s[56:59], s[0:1], 64")
    srd(24,2048); E("s_mov_b32 s23, 0x20000")
    E("s_waitcnt lgkmcnt(0)"); E("s_barrier")
    E("s_cmp_eq_u32 s3, 4"); E("s_cbranch_scc1 L_h0")
    E("s_cmp_eq_u32 s3, 5"); E("s_cbranch_scc1 L_h1")
    E("s_cmp_eq_u32 s3, 6"); E("s_cbranch_scc1 L_h2")
    E("s_branch L_h3"); E.reset()
    E.label("L_stream")

    vK,vV,vM0,vM1,vMX,vL,vQ=1,2,4,5,6,7,8
    D=[12,16,20,24]; T=[28,29,30,31]; X=[32,34]; ACC=36; S=44; RING0=76; NSLOT=45
    SEL=216; WT=224; PA=226; OA=227; YA=229; MH=230; WA=231; U0=232; U1=236; O=240; PK=244; CT=246
    E("s_lshl_b32 s28, s2, 19"); E("s_lshl_b32 s29, s3, 12"); E("s_add_u32 s28, s28, s29")
    E("v_and_b32 v1, 3, v0"); E("v_lshlrev_b32 v1, 4, v1"); E("v_lshrrev_b32 v3, 4, v0"); E("v_lshl_add_u32 v1, v3, 6, v1")
    E("v_bfe_u32 v3, v0, 2, 2"); E("v_lshl_add_u32 v1, v3, 8, v1")
    srd(8, 0x8000000)
    E("s_waitcnt lgkmcnt(0)")
    seq=[('K',n) for n in range(128)]+[('V',n) for n in range(128)]+[('W',n) for n in range(4)]
    free=list(range(NSLOT)); slot={}
    reserve=[False]
    RES=set(range((SEL-RING0)//4, NSLOT))
    def release(tag):
        s=slot[tag]
        free.append(s)
    def issue(tag):
        cand=[s for s in free if not (reserve[0] and s in RES)]
        assert cand, ("ring exhausted",tag)
        s=cand[0]; free.remove(s); slot[tag]=s; r=RING0+4*s
        kind,n=tag
        if kind=='K': E(f"buffer_load_dwordx4 v[{r}:{r+3}], v{vK}, s[8:11], s28 offen offset:{(n&3)*1024} nt",tag)
        elif kind=='V': E(f"buffer_load_dwordx4 v[{r}:{r+3}], v{vV}, s[12:15], s28 offen offset:{(n&3)*1024} nt",tag)
        else: E(f"buffer_load_dwordx4 v[{r}:{r+3}], v{WA}, s[20:23], s30 offen offset:{n*1024} nt",tag)
        if kind in 'KV' and (n&3)==3:
            if tag==('K',127): E(f"s_sub_u32 s28, s28, {31*16384}")
            elif tag!=('V',127): E("s_add_u32 s28, s28, 16384")
    def setup1():
        E("s_barrier")
        E("s_setprio 2")
        E("s_load_dwordx2 s[12:13], s[0:1], 16"); E("s_load_dwordx2 s[20:21], s[0:1], 32")
        srd(12,0x8000000); srd(20,0x400000)
        E(f"v_lshlrev_b32 v{vV}, 4, v0")
        for k in range(1,4):
            m=0x11111111<<k
            E(f"s_mov_b32 s{42+2*k}, {hex(m)}"); E(f"s_mov_b32 s{43+2*k}, {hex(m)}")
        E("v_mov_b32 v3, 0xffff0000"); E(f"v_mov_b32 v{vM0}, 0xffff")
        E(f"v_cndmask_b32 v{vM0}, v{vM0}, v3, s[44:45]"); E(f"v_cndmask_b32 v{vM1}, 0, v{vM0}, s[46:47]"); E(f"v_cndmask_b32 v{vM1}, v{vM1}, v3, s[48:49]")
        E(f"v_cndmask_b32 v{vM0}, v{vM0}, 0, s[46:47]"); E(f"v_cndmask_b32 v{vM0}, v{vM0}, 0, s[48:49]")
        E(f"v_mov_b32 v{vMX}, 0xff800000")
        for k in range(8): E(f"v_mov_b32 v{ACC+k}, 0")
    def qready():
        stamp(1)
        E(f"s_mov_b32 s50, {SPIN*8}"); E("v_mov_b32 v3, 0")
        E.label("L_qw")
        E(f"ds_read_b64 v[{T[0]}:{T[1]}], v3 offset:{L_FLAG}"); E(f"ds_read_b128 v[{vQ}:{vQ+3}], v{vV} offset:{L_Q}")
        E("s_waitcnt lgkmcnt(0)")
        E(f"v_cmp_ne_u32 vcc, 0, v{T[0]}"); E("s_cbranch_vccnz L_qx")
        E("s_sub_u32 s50, s50, 1"); E("s_cbranch_scc0 L_qw")
        E.label("L_qx")
        E(f"v_readfirstlane_b32 s36, v{T[1]}")
        stamp(2)
    dnext=[0]; pend=[]
    def k_reduce(items):
        tt={n:(T[2*i],T[2*i+1]) for i,(n,d) in enumerate(items)}
        for n,d in items:
            a,b=tt[n]; E(f"v_mov_b32_dpp v{a}, v{d} quad_perm:[0,0,0,0] {DPP}"); E(f"v_mov_b32_dpp v{b}, v{d+2} quad_perm:[2,2,2,2] {DPP}")
        for n,d in items:
            a,b=tt[n]; E(f"v_add_f32_dpp v{a}, v{d+1}, v{a} quad_perm:[1,1,1,1] {DPP}"); E(f"v_add_f32_dpp v{b}, v{d+3}, v{b} quad_perm:[3,3,3,3] {DPP}")
        for n,d in items:
            a,b=tt[n]; t=n>>2; j=n&3
            if j==0: E(f"v_add_f32 v{S+t}, v{a}, v{b}")
            else:
                E(f"v_add_f32 v{a}, v{a}, v{b}"); E(f"v_cndmask_b32 v{S+t}, v{S+t}, v{a}, s[{42+2*j}:{43+2*j}]")
            if j==3:
                rbf(S+t,S+t); E(f"v_mul_f32 v{S+t}, 0x3db504f3, v{S+t}"); rbf(S+t,S+t); E(f"v_max_f32 v{vMX}, v{vMX}, v{S+t}")
    def k_consume(ns):
        new=[]
        for n in ns:
            d=D[dnext[0]%4]; dnext[0]+=1; r=RING0+4*slot[('K',n)]
            E(f"v_mfma_f32_16x16x32_bf16 v[{d}:{d+3}], v[{r}:{r+3}], v[{vQ}:{vQ+3}], 0"); release(('K',n)); new.append((n,d))
        if pend: k_reduce(list(pend))
        pend[:]=new
    def allred(op, v, t):
        E(f"{op}_dpp v{v}, v{v}, v{v} quad_perm:[1,0,3,2] {DPP}"); E(f"{op}_dpp v{v}, v{v}, v{v} quad_perm:[2,3,0,1] {DPP}")
        E(f"v_mov_b32 v{t}, v{v}"); E(f"v_permlane16_swap_b32 v{t}, v{v}"); E(f"{op} v{v}, v{v}, v{t}")
        E(f"v_mov_b32 v{t}, v{v}"); E(f"v_permlane32_swap_b32 v{t}, v{v}"); E(f"{op} v{v}, v{v}, v{t}")
    def sm_head():
        k_reduce(list(pend)); pend[:]=[]
        stamp(3)
        allred("v_max_f32", vMX, 3); E(f"v_mov_b32 v{vL}, 0")
    def sm_chunk(ts):
        for t in ts: E(f"v_sub_f32 v{S+t}, v{S+t}, v{vMX}")
        for t in ts: E(f"v_mul_f32 v{S+t}, {hex(LOG2E)}, v{S+t}")
        for t in ts: E(f"v_exp_f32 v{S+t}, v{S+t}")
        for t in ts: E(f"v_add_f32 v{vL}, v{vL}, v{S+t}")
        for t in ts: E(f"v_cvt_pk_bf16_f32 v{S+t}, v{S+t}, v{S+t}")
    def sm_tail():
        allred("v_add_f32", vL, 3)
        E(f"v_lshlrev_b32 v3, 1, v0"); E("s_lshl_b32 s29, s3, 5"); E("v_add_u32 v3, s29, v3")
        E("s_mov_b64 exec, 0x1111"); E(f"ds_write_b64 v3, v[{vMX}:{vL}] offset:{L_ML}"); E("s_mov_b64 exec, -1")
        stamp(4)
    xn=[0]
    def v_consume(n):
        x=X[xn[0]%2]; xn[0]+=1; t=n>>2; j=n&3; r=RING0+4*slot[('V',n)]
        E(f"v_and_b32_dpp v{x}, v{S+t}, v{vM0} quad_perm:[{j},{j},{j},{j}] {DPP}")
        E(f"v_and_b32_dpp v{x+1}, v{S+t}, v{vM1} quad_perm:[{j},{j},{j},{j}] {DPP}")
        return (x,r,n)
    def v_mfma(x,r,n):
        E(f"v_mfma_f32_16x16x16_bf16 v[{ACC}:{ACC+3}], v[{x}:{x+1}], v[{r}:{r+1}], v[{ACC}:{ACC+3}]")
        E(f"v_mfma_f32_16x16x16_bf16 v[{ACC+4}:{ACC+7}], v[{x}:{x+1}], v[{r+2}:{r+3}], v[{ACC+4}:{ACC+7}]")
        release(('V',n))
    def tail_setup_a():
        assert all(s in free for s in RES)
        tag_setup(8)
        selectors(SEL, CT)
    def tail_setup_b():
        E(f"v_bfe_u32 v{CT}, v0, 2, 1"); E(f"v_lshlrev_b32 v{PA}, 10, v{CT}")
        E(f"v_bfe_u32 v{CT}, v0, 3, 1"); E(f"v_lshl_add_u32 v{PA}, v{CT}, 8, v{PA}")
        E(f"v_and_b32 v{CT}, 3, v0"); E(f"v_lshl_add_u32 v{PA}, v{CT}, 6, v{PA}")
        E(f"v_lshrrev_b32 v{CT}, 4, v0"); E(f"v_lshl_add_u32 v{PA}, v{CT}, 4, v{PA}")
        E("s_lshr_b32 s29, s2, 2"); E("s_lshl_b32 s31, s29, 2"); E("s_add_u32 s31, s31, s3")
        E("s_lshl_b32 s30, s31, 14"); E("s_lshl_b32 s31, s31, 11"); E(f"s_add_u32 s31, s31, {WS_OP}")
        E("s_and_b32 s33, s2, 3"); E("s_lshl_b32 s34, s33, 8"); E("s_add_u32 s30, s30, s34")
        E(f"v_and_b32 v{WA}, 15, v0"); E(f"v_lshlrev_b32 v{WA}, 4, v{WA}"); E(f"v_lshl_add_u32 v{WA}, v{CT}, 12, v{WA}")
        E("s_lshl_b32 s32, s33, 16"); E("s_lshl_b32 s29, s29, 6"); E("s_add_u32 s32, s32, s29"); E(f"s_add_u32 s32, s32, {WS_YP}")
        E(f"v_lshrrev_b32 v{YA}, 2, v0"); E(f"v_lshlrev_b32 v{YA}, 12, v{YA}"); E(f"v_and_b32 v{CT}, 3, v0"); E(f"v_lshl_add_u32 v{YA}, v{CT}, 4, v{YA}")
        E(f"v_mov_b32 v{MH}, 0xffffff00")
        E(f"v_lshlrev_b32 v{OA}, 5, v0"); E("s_lshl_b32 s29, s3, 11"); E(f"v_add_u32 v{OA}, s29, v{OA}")
        E(f"v_and_b32 v{228}, 15, v0"); E(f"v_lshlrev_b32 v228, 3, v228")
        E("s_lshl_b32 s29, s3, 10"); E(f"v_add_u32 v{vK}, s29, v{vV}")
    acts=[('q',)]+[('K',n) for n in range(128)]+[('smh',)]+[('smc',list(range(8*c,8*c+8))) for c in range(4)]+[('smt',)]+[('V',n) for n in range(128)]
    ai=0
    npace=len(pace)
    def do_actions(step, final=False):
        nonlocal ai
        if ai>=len(acts): return
        a=acts[ai]
        if a[0]=='q':
            if step<qstep: return
            qready(); ai+=1; a=acts[ai]
        if a[0]=='K':
            ns=[]
            while len(ns)<cu and acts[ai][0]=='K' and E.landed(acts[ai]) and acts[ai] in slot: ns.append(acts[ai][1]); ai+=1
            if ns: k_consume(ns)
            return
        if a[0]=='smh': sm_head(); ai+=1; return
        if a[0]=='smc': sm_chunk(a[1]); ai+=1; return
        if a[0]=='smt': sm_tail(); ai+=1; return
        if a[0]=='V':
            c=0; st=[]
            while c<2 and ai<len(acts) and acts[ai] in slot and E.landed(acts[ai]):
                st.append(v_consume(acts[ai][1])); ai+=1; c+=1
            for s_ in st: v_mfma(*s_)
    N0=pace[0]
    for i,tag in enumerate(seq):
        N=pace[i%npace]
        if i>=N0: E.wait_n(N-1)
        issue(tag)
        if i==N0-1: setup1()
        if i==100: reserve[0]=True
        do_actions(i)
        if i==170: tail_setup_a()
        if i==172: tail_setup_b()
        if i>=N0: E.safe()
    while ai<len(acts):
        a=acts[ai]; assert a[0]=='V'
        st=v_consume(a[1]); E.wait_tag(a); v_mfma(*st); ai+=1
    stamp(5)
    E(f"ds_write_b128 v{OA}, v[{ACC}:{ACC+3}] offset:{L_O}"); E(f"ds_write_b128 v{OA}, v[{ACC+4}:{ACC+7}] offset:{L_O+16}")
    E("s_waitcnt lgkmcnt(0)"); E("s_barrier")
    stamp(6)
    E(f"ds_read_b64 v[{WT}:{WT+1}], v228 offset:{L_W}")
    poll([f"buffer_load_dwordx4 v[{U0}:{U0+3}], v{PA}, s[16:19], s31 offen sc1", f"buffer_load_dwordx4 v[{U1}:{U1+3}], v{PA}, s[16:19], s31 offen offset:512 sc1"],[U0,U1],CT,8,True)
    stamp(7)
    for k in range(4): E(f"v_mul_f32 v{O+k}, v{WT}, v{U0+k}")
    for k in range(4): E(f"v_fmac_f32 v{O+k}, v{WT+1}, v{U1+k}")
    for m in ("quad_perm:[1,0,3,2]","quad_perm:[2,3,0,1]","row_ror:8"):
        for k in range(4): E(f"v_add_f32_dpp v{O+k}, v{O+k}, v{O+k} {m} {DPP}")
    E(f"v_cvt_pk_bf16_f32 v{PK}, v{O}, v{O+1}"); E(f"v_cvt_pk_bf16_f32 v{PK+1}, v{O+2}, v{O+3}")
    for j in range(4):
        buildA(S+4*j, PK+(j>>1), j&1, SEL)
        if j>0:
            r=RING0+4*slot[('W',j-1)]
            E(f"v_mfma_f32_16x16x32_bf16 v[{ACC}:{ACC+3}], v[{S+4*j-4}:{S+4*j-1}], v[{r}:{r+3}], "+("0" if j==1 else f"v[{ACC}:{ACC+3}]"))
    r=RING0+4*slot[('W',3)]
    E(f"v_mfma_f32_16x16x32_bf16 v[{ACC}:{ACC+3}], v[{S+12}:{S+15}], v[{r}:{r+3}], v[{ACC}:{ACC+3}]")
    E("s_cmp_eq_u32 s3, 0"); E("s_cbranch_scc1 L_s0")
    h=list(E.hist)
    E(f"ds_write_b128 v{vK}, v[{ACC}:{ACC+3}] offset:{L_Y}"); E("s_waitcnt lgkmcnt(0)"); E("s_barrier")
    finish()
    E.label("L_s0"); E.hist=h
    E("s_barrier")
    for k in range(3): E(f"ds_read_b128 v[{S+4*k}:{S+4*k+3}], v{vV} offset:{L_Y+1024*(k+1)}")
    for k in range(3):
        E(f"s_waitcnt lgkmcnt({2-k})")
        for c in range(4): E(f"v_add_f32 v{ACC+c}, v{ACC+c}, v{S+4*k+c}")
    tag_insert(ACC,MH)
    E(f"buffer_store_dwordx4 v[{ACC}:{ACC+3}], v{YA}, s[16:19], s32 offen sc1")
    stamp(8)
    finish()

    E.label("L_h0")
    E("s_and_b32 s29, s2, 7"); E("s_lshr_b32 s30, s2, 4"); E("s_lshl_b32 s30, s30, 3"); E("s_or_b32 s29, s29, s30")
    E("s_and_b32 s31, s29, 3")
    E("v_lshlrev_b32 v2, 4, v0"); E("v_lshrrev_b32 v3, 4, v0"); E("v_and_b32 v1, 15, v0"); E("v_lshlrev_b32 v1, 4, v1")
    E("s_bitcmp1_b32 s2, 3"); E("s_cbranch_scc1 L_h0f")
    E("s_lshr_b32 s32, s29, 2"); E("s_lshl_b32 s28, s32, 8"); E("s_lshl_b32 s30, s31, 20"); E("s_add_u32 s28, s28, s30")
    E("s_mov_b32 s33, 8192"); E("s_mov_b32 s22, 0x400000"); E("v_lshl_add_u32 v1, v3, 18, v1")
    E("s_lshl_b32 s34, s32, 11"); E("s_lshl_b32 s30, s31, 9"); E("s_add_u32 s34, s34, s30"); E(f"s_add_u32 s34, s34, {WS_QP}")
    E("s_mov_b32 s20, s4"); E("s_mov_b32 s21, s5")
    epoch_load(78)
    E("buffer_load_dwordx4 v[4:7], v2, s[24:27], 0 offen"); E("buffer_load_dwordx4 v[8:11], v2, s[24:27], 0 offen offset:1024")
    for j in range(32):
        E(f"buffer_load_dwordx4 v[{128+4*j}:{131+4*j}], v1, s[20:23], s28 offen nt"); E("s_add_u32 s28, s28, s33")
    E("v_and_b32 v76, 15, v0"); E("v_lshlrev_b32 v76, 4, v76"); E("v_lshrrev_b32 v28, 5, v0"); E("v_lshl_add_u32 v76, v28, 8, v76")
    E("v_bfe_u32 v28, v0, 4, 1"); E("v_lshl_add_u32 v76, v28, 16, v76")
    E("s_mov_b32 s35, 0")
    E("s_branch L_h0c"); E.reset()
    E.safe()
    E.label("L_h0f")
    E("s_cmp_ge_u32 s29, 56"); E("s_cselect_b32 s30, 56, 0"); E("s_cselect_b32 s35, 1024, 0"); E("s_sub_u32 s32, s29, s30"); E("s_lshr_b32 s32, s32, 2")
    E("s_lshl_b32 s28, s32, 8"); E(f"s_mul_i32 s30, s31, {128*3584}"); E("s_add_u32 s28, s28, s30")
    E("s_mov_b32 s33, 3584"); E(f"s_mov_b32 s22, {512*3584}"); E(f"v_mul_u32_u24 v3, {32*3584}, v3"); E("v_add_u32 v1, v1, v3")
    E("s_lshl_b32 s34, s32, 13"); E("s_add_u32 s34, s34, s35"); E("s_lshl_b32 s30, s31, 7"); E("s_add_u32 s34, s34, s30"); E(f"s_add_u32 s34, s34, {WS_GP}")
    E("s_cmp_ge_u32 s29, 56"); E("s_cselect_b32 s20, s54, s52"); E("s_cselect_b32 s21, s55, s53")
    epoch_load(78)
    E("buffer_load_dwordx4 v[4:7], v2, s[24:27], 0 offen"); E("buffer_load_dwordx4 v[8:11], v2, s[24:27], 0 offen offset:1024")
    E("v_and_b32 v76, 3, v0"); E("v_lshlrev_b32 v76, 4, v76"); E("v_lshrrev_b32 v28, 5, v0"); E("v_lshl_add_u32 v76, v28, 6, v76")
    E("v_bfe_u32 v28, v0, 4, 1"); E("v_lshl_add_u32 v76, v28, 9, v76"); E("v_bfe_u32 v28, v0, 2, 2"); E("v_lshl_add_u32 v76, v28, 11, v76")
    E("s_mov_b32 s35, 1")
    E.label("L_h0c"); E.reset()
    E("s_cmp_eq_u32 s35, 0"); E("s_cbranch_scc1 L_h0d")
    E("s_waitcnt vmcnt(0)")
    E("s_cmp_ge_u32 s29, 112"); E("s_cbranch_scc1 L_h0skip")
    E.label("L_h0d")
    E.safe()
    selectors(40,28)
    E("s_waitcnt vmcnt(32)")
    stamp(1)
    for b in range(2):
        for k in range(4):
            E(f"v_lshlrev_b32 v{12+8*b+2*k}, 16, v{4+4*b+k}"); E(f"v_and_b32 v{13+8*b+2*k}, 0xffff0000, v{4+4*b+k}")
    def red2(a,c,t):
        E(f"v_permlane32_swap_b32 v{a}, v{c}"); E(f"v_add_f32 v{a}, v{a}, v{c}")
        E(f"v_mov_b32 v{t}, v{a}"); E(f"v_permlane16_swap_b32 v{t}, v{a}"); E(f"v_add_f32 v{a}, v{a}, v{t}")
        for m in (1,2,4,8): E(f"v_add_f32_dpp v{a}, v{a}, v{a} row_ror:{m} {DPP}")
        E(f"v_mul_f32 v{a}, 0x3b000000, v{a}")
    for b in range(2):
        E(f"v_add_f32 v{28+b}, v{12+8*b}, v{13+8*b}")
    for k in range(2,8):
        for b in range(2): E(f"v_add_f32 v{28+b}, v{28+b}, v{12+8*b+k}")
    red2(28,29,30)
    E("v_readlane_b32 s52, v28, 0"); E("v_readlane_b32 s53, v28, 32")
    rbf(31,28)
    E.safe()
    for k in range(8):
        for b in range(2):
            E(f"v_subrev_f32 v{32+b}, s{52+b}, v{12+8*b+k}")
            if k==0: E(f"v_mul_f32 v{34+b}, v{32+b}, v{32+b}")
            else: E(f"v_fmac_f32 v{34+b}, v{32+b}, v{32+b}")
    red2(34,35,30)
    rbf(34,34); E("v_add_f32 v34, 0x3727c5ac, v34"); rbf(34,34); E("v_sqrt_f32 v34, v34"); rbf(34,34); E("v_rcp_f32 v34, v34")
    E("v_readlane_b32 s54, v31, 0"); E("v_readlane_b32 s55, v31, 32"); E("v_readlane_b32 s56, v34, 0"); E("v_readlane_b32 s57, v34, 32")
    E.safe()
    for b in range(2):
        for k in range(8): E(f"v_subrev_f32 v{12+8*b+k}, s{54+b}, v{12+8*b+k}")
        for k in range(4): E(f"v_cvt_pk_bf16_f32 v{4+4*b+k}, v{12+8*b+2*k}, v{13+8*b+2*k}")
        for k in range(4):
            E(f"v_lshlrev_b32 v{12+8*b+2*k}, 16, v{4+4*b+k}"); E(f"v_and_b32 v{13+8*b+2*k}, 0xffff0000, v{4+4*b+k}")
        for k in range(8): E(f"v_mul_f32 v{12+8*b+k}, s{56+b}, v{12+8*b+k}")
        for k in range(4): E(f"v_cvt_pk_bf16_f32 v{4+4*b+k}, v{12+8*b+2*k}, v{13+8*b+2*k}")
        E(f"ds_write_b128 v2, v[{4+4*b}:{7+4*b}] offset:{L_XN+1024*b}")
        E.safe()
    E("v_bfe_u32 v28, v0, 2, 1"); E("v_lshlrev_b32 v28, 10, v28"); E("v_lshrrev_b32 v29, 4, v0"); E("v_lshl_add_u32 v28, v29, 6, v28")
    E("s_lshl_b32 s30, s31, 8"); E("v_add_u32 v28, s30, v28")
    for k in range(4): E(f"ds_read_b128 v[{48+4*k}:{51+4*k}], v28 offset:{L_XN+16*k}")
    E("v_mov_b32 v77, 0xfffffff0")
    tag_setup(4,78)
    E("s_waitcnt lgkmcnt(0)")
    stamp(2)
    E("s_cmp_eq_u32 s35, 0"); E("s_cbranch_scc1 L_h0m")
    for j in range(32):
        if j>=hpace: E(f"s_waitcnt vmcnt({hpace-1})")
        E(f"buffer_load_dwordx4 v[{128+4*j}:{131+4*j}], v1, s[20:23], s28 offen nt"); E("s_add_u32 s28, s28, s33")
        if j%4==3: E.safe()
    E.label("L_h0m"); E.reset()
    for j in range(32):
        a=64+4*(j&1)
        buildA(a, 48+(j>>1), j&1, 40)
        E(f"s_waitcnt vmcnt({31-j})")
        E(f"v_mfma_f32_16x16x32_bf16 v[72:75], v[{a}:{a+3}], v[{128+4*j}:{131+4*j}], "+("0" if j==0 else "v[72:75]"))
        E.safe()
    tag_insert(72,77)
    E("buffer_store_dwordx4 v[72:75], v76, s[16:19], s34 offen sc1")
    stamp(3)
    E("s_branch L_red"); E.reset()
    E.label("L_h0skip")
    tag_setup(4,78)
    E("s_branch L_red"); E.reset()
    E.safe()
    E.label("L_h1")
    epoch_load(44)
    E("s_lshr_b32 s29, s2, 4"); E("s_lshl_b32 s28, s29, 13"); E(f"s_add_u32 s28, s28, {WS_QP}")
    E("v_and_b32 v3, 3, v0"); E("v_lshlrev_b32 v3, 4, v3"); E("v_lshrrev_b32 v1, 2, v0"); E("v_lshl_add_u32 v1, v1, 9, v3")
    E("v_lshrrev_b32 v2, 4, v0"); E("v_lshl_add_u32 v2, v2, 6, v3"); E("v_bfe_u32 v3, v0, 2, 2"); E("v_lshl_add_u32 v2, v3, 11, v2")
    E("s_waitcnt vmcnt(0)"); tag_setup(4,44)
    poll(["buffer_load_dwordx4 v[8:11], v1, s[16:19], s28 offen offset:256 sc1"],[8],4,4,False,sleep=8)
    stamp(1)
    E.safe()
    poll([f"buffer_load_dwordx4 v[{8+4*k}:{11+4*k}], v2, s[16:19], s28 offen offset:{k*256} sc1" for k in range(8)],[8+4*k for k in range(8)],4,4,False,sleep=4)
    E.safe()
    for rho in range(1,4):
        for c in range(8): E(f"v_add_f32 v{8+c}, v{8+c}, v{8+8*rho+c}")
    for c in range(4): E(f"v_cvt_pk_bf16_f32 v{40+c}, v{8+2*c}, v{9+2*c}")
    E("v_lshlrev_b32 v3, 4, v0"); E(f"ds_write_b128 v3, v[40:43] offset:{L_Q}")
    E("v_mov_b32 v4, 0"); E("v_mov_b32 v6, 1"); E("v_mov_b32 v7, s36"); E("s_waitcnt lgkmcnt(0)"); E(f"ds_write_b64 v4, v[6:7] offset:{L_FLAG}")
    stamp(2)
    E.label("L_red"); E.reset()
    tag_bits(8)
    E("s_sub_u32 s29, s3, 4"); E("s_lshl_b32 s30, s29, 1")
    E("v_lshrrev_b32 v1, 5, v0"); E("v_add_u32 v1, s30, v1")
    E("v_lshlrev_b32 v2, 3, v1")
    E(f"s_mov_b32 s50, {SPIN*4}")
    E.label("L_mlw")
    for s_ in range(4): E(f"ds_read_b64 v[{8+2*s_}:{9+2*s_}], v2 offset:{L_ML+32*s_}")
    E("s_waitcnt lgkmcnt(0)")
    E("v_min_u32 v4, v9, v11"); E("v_min3_u32 v4, v4, v13, v15"); E("v_cmp_eq_u32 vcc, 0, v4")
    E("s_cbranch_vccz L_mlx")
    E("s_sleep 8"); E("s_sub_u32 s50, s50, 1"); E("s_cbranch_scc0 L_mlw")
    E.label("L_mlx")
    E.safe()
    stamp(4)
    E("v_max_f32 v16, v8, v10"); E("v_max3_f32 v16, v16, v12, v14")
    for s_ in range(4): E(f"v_sub_f32 v{20+s_}, v{8+2*s_}, v16")
    for s_ in range(4): E(f"v_mul_f32 v{20+s_}, {hex(LOG2E)}, v{20+s_}")
    for s_ in range(4): E(f"v_exp_f32 v{20+s_}, v{20+s_}")
    E("v_mul_f32 v17, v20, v9")
    for s_ in range(1,4): E(f"v_fmac_f32 v17, v{20+s_}, v{9+2*s_}")
    E("v_mov_b32 v18, 0"); E("v_mov_b32 v19, 0"); E("v_mov_b32 v24, 0xffffff00")
    tag_insert(16,24)
    E("s_bfe_u32 s31, s2, 0x30004"); E("s_lshr_b32 s32, s2, 7"); E("s_and_b32 s33, s2, 15")
    E("s_lshl_b32 s34, s31, 11"); E("s_lshl_b32 s35, s32, 8"); E("s_add_u32 s34, s34, s35"); E("s_lshl_b32 s35, s33, 4"); E("s_add_u32 s34, s34, s35"); E(f"s_add_u32 s34, s34, {WS_ML}")
    E("v_lshlrev_b32 v3, 9, v1")
    E("s_mov_b32 exec_lo, 1"); E("s_mov_b32 exec_hi, 1")
    E("buffer_store_dwordx4 v[16:19], v3, s[16:19], s34 offen sc1")
    E("s_mov_b64 exec, -1")
    E.safe()
    E("v_and_b32 v4, 3, v0"); E("v_lshlrev_b32 v4, 4, v4"); E("v_bfe_u32 v5, v0, 2, 3"); E("v_lshl_add_u32 v4, v5, 11, v4"); E("v_lshl_add_u32 v25, v1, 14, v4")
    E("s_lshl_b32 s34, s31, 16"); E("s_lshl_b32 s35, s32, 10"); E("s_add_u32 s34, s34, s35"); E("s_lshl_b32 s35, s33, 6"); E("s_add_u32 s34, s34, s35"); E(f"s_add_u32 s34, s34, {WS_OP}")
    E("v_lshlrev_b32 v26, 4, v0"); E("s_lshl_b32 s35, s29, 10"); E("v_add_u32 v26, s35, v26")
    E("s_cmp_eq_u32 s3, 4"); E("s_cbranch_scc1 L_redw")
    E("s_lshr_b32 s28, s2, 3"); E("s_lshl_b32 s28, s28, 9"); E(f"s_add_u32 s28, s28, {WS_ML}")
    E("v_and_b32 v3, 31, v0"); E("v_lshlrev_b32 v3, 4, v3")
    poll(["buffer_load_dwordx4 v[8:11], v3, s[16:19], s28 offen sc1"],[8],4,8,False,sleep=8)
    E.safe()
    E("v_mov_b32 v12, v8")
    for m in (1,2,4,8): E(f"v_max_f32_dpp v12, v12, v12 row_ror:{m} {DPP}")
    E("v_sub_f32 v8, v8, v12"); E(f"v_mul_f32 v8, {hex(LOG2E)}, v8"); E("v_exp_f32 v8, v8"); E("v_mul_f32 v12, v8, v9")
    for m in (1,2,4,8): E(f"v_add_f32_dpp v12, v12, v12 row_ror:{m} {DPP}")
    E("v_rcp_f32 v12, v12"); E("v_mul_f32 v8, v8, v12")
    E("v_and_b32 v4, 3, v0"); E("v_lshlrev_b32 v4, 3, v4"); E("v_bfe_u32 v5, v0, 2, 1"); E("v_lshl_add_u32 v4, v5, 6, v4")
    E("v_bfe_u32 v5, v0, 4, 1"); E("v_lshl_add_u32 v4, v5, 5, v4"); E("v_bfe_u32 v5, v0, 3, 1"); E("v_lshl_add_u32 v4, v5, 2, v4")
    E(f"ds_write_b32 v4, v8 offset:{L_W}")
    E("s_waitcnt lgkmcnt(0)")
    E.label("L_redw"); E.reset()
    stamp(5)
    E.safe()
    E("s_setprio 3")
    E("s_barrier")
    for s_ in range(4): E(f"ds_read_b128 v[{32+4*s_}:{35+4*s_}], v26 offset:{L_O+2048*s_}")
    for s_ in range(4):
        E(f"s_waitcnt lgkmcnt({3-s_})")
        for c in range(4): E((f"v_mul_f32 v{28+c}, v20, v{32+c}") if s_==0 else f"v_fmac_f32 v{28+c}, v{20+s_}, v{32+4*s_+c}")
    tag_insert(28,24)
    E("buffer_store_dwordx4 v[28:31], v25, s[16:19], s34 offen sc1")
    stamp(6)
    finish()
    E.safe()
    E.label("L_h2")
    E("s_mov_b32 s20, s56"); E("s_mov_b32 s21, s57"); E(f"s_mov_b32 s22, {1792*1024}")
    E("s_cmp_ge_u32 s2, 224"); E("s_cbranch_scc1 L_fin")
    epoch_load(50)
    E("s_waitcnt vmcnt(0)")
    tag_setup(4,50)
    selectors(40,4)
    E.safe()
    E("s_lshr_b32 s29, s2, 2"); E("s_and_b32 s30, s2, 3")
    E("s_lshl_b32 s28, s29, 11"); E(f"s_add_u32 s28, s28, {WS_GP}")
    E("v_and_b32 v1, 15, v0"); E("v_lshrrev_b32 v3, 4, v0"); E("v_lshlrev_b32 v2, 4, v1"); E("v_lshlrev_b32 v1, 7, v1"); E("v_lshl_add_u32 v1, v3, 4, v1")
    E("v_lshl_add_u32 v2, v3, 13, v2"); E("v_add_u32 v48, 4096, v2")
    E("s_lshl_b32 s31, s29, 15"); E("s_lshl_b32 s32, s30, 8"); E("s_add_u32 s31, s31, s32")
    poll(["buffer_load_dwordx4 v[8:11], v1, s[16:19], s28 offen sc1","buffer_load_dwordx4 v[12:15], v1, s[16:19], s28 offen offset:64 sc1"],[8,12],4,4,False,sleep=64)
    stamp(1)
    for j in range(8): E(f"buffer_load_dwordx4 v[{64+4*j}:{67+4*j}], v{2 if j<4 else 48}, s[20:23], s31 offen offset:{(j&3)*1024} nt",('d',j))
    E.safe()
    for m in ("quad_perm:[1,0,3,2]","quad_perm:[2,3,0,1]"):
        for c in range(8): E(f"v_add_f32_dpp v{8+c}, v{8+c}, v{8+c} {m} {DPP}")
    for c in range(8): rbf(8+c,8+c)
    E.safe()
    E("s_mov_b32 s33, 0x3d372713")
    for c in range(8): E(f"v_mul_f32 v{16+c}, v{8+c}, v{8+c}")
    for c in range(8): E(f"v_mul_f32 v{16+c}, v{16+c}, v{8+c}")
    for c in range(8): E(f"v_fma_f32 v{16+c}, v{16+c}, s33, v{8+c}")
    for c in range(8): E(f"v_mul_f32 v{16+c}, 0xc0135761, v{16+c}")
    E.safe()
    for c in range(8): E(f"v_exp_f32 v{16+c}, v{16+c}")
    for c in range(8): E(f"v_add_f32 v{16+c}, 1.0, v{16+c}")
    for c in range(8): E(f"v_rcp_f32 v{16+c}, v{16+c}")
    for c in range(8): E(f"v_mul_f32 v{16+c}, v{16+c}, v{8+c}")
    E.safe()
    for c in range(8): rbf(16+c,16+c)
    E("s_mov_b32 vcc_lo, 0xff00ff00"); E("s_mov_b32 vcc_hi, 0xff00ff00")
    for c in range(8): E(f"v_cndmask_b32 v{8+c}, v{16+c}, v{8+c}, vcc")
    E.safe()
    for c in range(8): E(f"v_mul_f32_dpp v{16+c}, v{8+c}, v{8+c} row_ror:8 {DPP}")
    for c in range(4): E(f"v_cvt_pk_bf16_f32 v{24+c}, v{16+2*c}, v{17+2*c}")
    tag_bits(8); E("v_mov_b32 v49, 0xffffff00")
    E("s_lshl_b32 s32, s30, 16"); E("s_lshl_b32 s33, s29, 6"); E("s_add_u32 s32, s32, s33"); E(f"s_add_u32 s32, s32, {WS_FP}")
    E("v_lshrrev_b32 v3, 2, v0"); E("v_lshlrev_b32 v3, 12, v3"); E("v_and_b32 v4, 3, v0"); E("v_lshl_add_u32 v3, v4, 4, v3")
    for j in range(8):
        a=28+4*(j&1); buildA(a,24+(j>>1),j&1,40); E.wait_tag(('d',j))
        E(f"v_mfma_f32_16x16x32_bf16 v[36:39], v[{a}:{a+3}], v[{64+4*j}:{67+4*j}], "+("0" if j==0 else "v[36:39]"))
        E.safe()
    tag_insert(36,49)
    E("buffer_store_dwordx4 v[36:39], v3, s[16:19], s32 offen sc1")
    stamp(2)
    E.label("L_fin")
    finish()
    E.safe()
    E.label("L_h3")
    E("s_mov_b32 s20, s58"); E("s_mov_b32 s21, s59"); E("s_mov_b32 s22, 2048")
    if warm:
        E("s_getpc_b64 s[4:5]"); E.label("L_pc")
        E(f"s_sub_u32 s4, s4, L_pc-{KN}"); E("s_subb_u32 s5, s5, 0")
        E("s_bfe_u32 s29, s2, 0x20003"); E("s_lshl_b32 s29, s29, 13"); E("v_lshlrev_b32 v1, 7, v0"); E("v_add_u32 v1, s29, v1")
        E(f"v_min_u32 v1, L_end-{KN}, v1")
        E("global_load_dword v2, v1, s[4:5]")
    E("s_waitcnt vmcnt(0)"); E.vm=[]
    if warm:
        E("s_mov_b32 s51, 1"); E("s_branch L_pad0")
        E.label("L_padret"); E("s_mov_b32 s51, 0")
    stamp(1)
    E("s_cmp_ge_u32 s2, 64"); E("s_cbranch_scc1 L_fin")
    epoch_load(50)
    E("s_waitcnt vmcnt(0)")
    tag_setup(8,50)
    E("s_and_b32 s29, s2, 3"); E("s_lshr_b32 s30, s2, 2")
    E("s_lshl_b32 s28, s29, 16"); E("s_lshl_b32 s31, s30, 12"); E("s_add_u32 s28, s28, s31"); E(f"s_add_u32 s31, s28, {WS_YP}"); E(f"s_add_u32 s28, s28, {WS_FP}")
    E("v_lshlrev_b32 v1, 4, v0")
    E("s_bfe_u32 s32, s30, 0x10002"); E("s_lshl_b32 s32, s32, 10"); E("s_lshl_b32 s33, s29, 8"); E("s_add_u32 s32, s32, s33")
    E("s_and_b32 s33, s30, 3"); E("s_lshl_b32 s33, s33, 6"); E("s_add_u32 s32, s32, s33"); E("s_lshr_b32 s33, s30, 3"); E("s_lshl_b32 s33, s33, 3"); E("s_add_u32 s32, s32, s33")
    E("v_and_b32 v2, 3, v0"); E("v_lshlrev_b32 v2, 4, v2"); E("v_lshrrev_b32 v3, 4, v0"); E("v_lshl_add_u32 v2, v3, 1, v2")
    E("buffer_load_ushort v30, v2, s[24:27], s32 offen")
    E("v_and_b32 v33, 31, v0"); E("v_lshlrev_b32 v33, 4, v33")
    E.safe()
    def fred():
        for z in range(1,4):
            for c in range(4): E(f"v_add_f32 v{8+c}, v{8+c}, v{8+4*z+c}")
        E("v_permlane32_swap_b32 v8, v10"); E("v_permlane32_swap_b32 v9, v11")
        E("v_add_f32 v8, v8, v10"); E("v_add_f32 v9, v9, v11")
        E("v_permlane16_swap_b32 v8, v9"); E("v_add_f32 v8, v8, v9")
        E(f"v_add_f32_dpp v8, v8, v8 row_ror:4 {DPP}"); E(f"v_add_f32_dpp v8, v8, v8 row_ror:8 {DPP}")
    poll([f"buffer_load_dwordx4 v[{8+4*z}:{11+4*z}], v{1 if z<3 else 33}, s[16:19], s28 offen offset:{z*1024} sc1" for z in range(4)],[8,12,16,20],4,8,True,sleep=64)
    E.safe()
    E("s_mov_b32 exec_lo, 0")
    for c in range(4): E(f"v_mov_b32 v{20+c}, 0")
    E("s_mov_b64 exec, -1")
    fred(); rbf(31,8); E("v_lshlrev_b32 v30, 16, v30"); E("v_mov_b32 v32, s36"); E("v_mov_b32 v34, 0")
    stamp(2)
    E.safe()
    E("s_setprio 3")
    E("s_barrier"); E("s_barrier")
    stamp(3)
    poll([f"buffer_load_dwordx4 v[{8+4*z}:{11+4*z}], v1, s[16:19], s31 offen offset:{z*1024} sc1" for z in range(4)],[8,12,16,20],4,8,True)
    stamp(4)
    fred(); rbf(8,8); E("v_add_f32 v8, v8, v30"); rbf(8,8); E("v_add_f32 v8, v8, v31"); E("v_cvt_pk_bf16_f32 v8, v8, v8")
    E("s_mov_b32 exec_lo, 0x000f000f"); E("s_mov_b32 exec_hi, 0x000f000f")
    E("buffer_store_short v8, v2, s[20:23], s32 offen")
    E("s_cmp_lg_u32 s2, 0"); E("s_cbranch_scc1 L_fin2")
    E("s_mov_b64 exec, 1")
    E(f"buffer_store_dword v32, v34, s[16:19], 0 offen offset:{WS_EPOCH} sc1")
    E.label("L_fin2")
    stamp(5)
    finish()
    if dbg:
        E.label("L_dbg")
        E("s_memrealtime s[78:79]"); E("s_getreg_b32 s80, hwreg(HW_REG_XCC_ID)")
        E("s_waitcnt lgkmcnt(0)")
        if probe:
            pw,pwave,pk=probe
            E(f"s_cmp_lg_u32 s2, {pw}"); E("s_cbranch_scc1 L_end"); E(f"s_cmp_lg_u32 s3, {pwave}"); E("s_cbranch_scc1 L_end")
            E(f"s_add_u32 s29, s{60+2*pk}, 8000"); E("s_mov_b32 s50, 0x100000")
            E.label("L_spin"); E("s_memrealtime s[82:83]"); E("s_waitcnt lgkmcnt(0)"); E("s_sub_u32 s30, s82, s29"); E("s_cmp_ge_i32 s30, 0"); E("s_cbranch_scc1 L_end")
            E("s_sub_u32 s50, s50, 1"); E("s_cbranch_scc0 L_spin"); E("s_branch L_end")
        E("s_mov_b64 exec, -1"); E("v_mov_b32 v1, 0")
        for k in range(11): E(f"v_writelane_b32 v1, s{60+2*k}, {k}")
        E("s_lshl_b32 s29, s2, 3"); E("s_add_u32 s29, s29, s3"); E("s_lshl_b32 s29, s29, 6"); E(f"s_add_u32 s29, s29, {WS_DBG}")
        E("v_mbcnt_lo_u32_b32 v2, -1, 0"); E("v_lshlrev_b32 v2, 2, v2"); E("s_mov_b64 exec, 0xffff")
        E("buffer_store_dword v1, v2, s[16:19], s29 offen")
    E.label("L_end")
    E("s_endpgm")
    return E

HEAD=open(os.path.join(os.path.dirname(os.path.abspath(__file__)),"head.txt")).read()
def wrap(body):
    return HEAD+f"""; @launch grid=(256,1,1) block=(512,1,1) lds={LDS_SIZE}
.amdgcn_target "amdgcn-amd-amdhsa--gfx950"
.text
.globl {KN}
.p2align 12
.p2align 8
.type {KN},@function
{KN}:
"""+body+f"""
.section .rodata,"a"
.p2align 6
.amdhsa_kernel {KN}
  .amdhsa_next_free_vgpr 256
  .amdhsa_next_free_sgpr 96
  .amdhsa_accum_offset 256
  .amdhsa_group_segment_fixed_size 0
  .amdhsa_kernarg_size 96
  .amdhsa_user_sgpr_count 2
  .amdhsa_user_sgpr_kernarg_segment_ptr 1
  .amdhsa_system_sgpr_workgroup_id_x 1
.end_amdhsa_kernel
"""
ENTRY_OFF=0x300
def build_text(**kw):
    E=gen(**kw); warm=kw.get("warm",True)
    lines=E.out
    if not warm:
        return wrap("\n".join(l for l in lines if not l.startswith("@SAFE")))
    t="\n".join((f"SAFE{l[5:]}:" if l.startswith("@SAFE") else l) for l in lines)+"\nL_pad0:\n"
    tmp=f"gen_p1_{os.getpid()}.s"; open(tmp,"w").write(wrap(t))
    subprocess.run(["clang","-x","assembler","-target","amdgcn-amd-amdhsa","-mcpu=gfx950","-c",tmp,"-o",tmp+".o"],check=True)
    nm=subprocess.run(["llvm-readelf","-s",tmp+".o"],capture_output=True,text=True).stdout
    addr={}
    for ln in nm.splitlines():
        p=ln.split()
        if len(p)>=8 and p[7].startswith("SAFE"): addr[int(p[7][4:])]=int(p[1],16)
    chosen=[]; nxt=1024+ (ENTRY_OFF//1024)*1024
    for k in sorted(addr):
        a=addr[k]+ENTRY_OFF+8*len(chosen)
        if a>=nxt:
            chosen.append(k); nxt=(a//1024+1)*1024
    out=[]
    for l in lines:
        if l.startswith("@SAFE"):
            k=int(l[5:])
            if k in chosen:
                i=chosen.index(k); tgt=f"L_pad{i+1}" if i+1<len(chosen) else "L_padret"
                out.append(f"L_pad{i}:"); out.append("    s_cmp_eq_u32 s51, 1"); out.append(f"    s_cbranch_scc1 {tgt}")
        else: out.append(l)
    return wrap("\n".join(out))
if __name__=="__main__":
    kw=eval("dict("+(sys.argv[2] if len(sys.argv)>2 else "")+")")
    open(sys.argv[1],"w").write(build_text(**kw))
```

```python
import sys, subprocess, re, os
sys.path.insert(0, os.path.dirname(os.path.abspath(__file__)))
from emit import Em
KN="parallel_sum__gqa_block_cached__geglu_ffn__decode_kernel"
DPP="row_mask:0xf bank_mask:0xf"
WS_EPOCH=0; WS_QP=0x10000; WS_GP=0x30000; WS_OP=0x80000; WS_YP=0x100000; WS_DBG=0x180000; WS_SIZE=0x200000
L_FLAG=0; L_ML=64; L_Q=1024; L_XN=2048; L_O=4096; L_Y=12288; LDS_SIZE=16384
SPIN=0x4000
LOG2E=0x3fb8aa3b

def spread(v,bits): return sum(((v>>k)&1)<<b for k,b in enumerate(bits))

def gen(pace=(5,), tail=None, qstep=44, trigA=28, trigB=64, dbg=False, warm=True, cu=2, probe=None,
        mode="split", sbits=(15,17,20,21), tbits=(14,16,18,19,22), hwin=None, abl=()):
    E=Em()
    def stamp(k):
        if dbg: E(f"s_memrealtime s[{60+2*k}:{61+2*k}]")
    def finish():
        if dbg: E("s_branch L_dbg")
        else: E("s_endpgm")
        E.reset()
    def epoch_load(v):
        E(f"v_mov_b32 v{v}, 0"); E(f"buffer_load_dword v{v}, v{v}, s[16:19], 0 offen offset:{WS_EPOCH} sc1")
    def tag_from(v):
        E(f"v_readfirstlane_b32 s36, v{v}"); E("s_add_u32 s36, s36, 0x01010101")
    def tag_bits(bits):
        for k in range(4): E(f"s_bfe_u32 s{37+k}, s36, {hex((bits<<16)|(8*k))}")
    def tag_insert(r, vmask):
        for k in range(4): E(f"v_and_or_b32 v{r+k}, v{r+k}, v{vmask}, s{37+k}")
    def check(units, t, bits):
        for n,a in enumerate(units):
            for k in range(4): E(f"v_xor_b32 v{a+k}, s{37+k}, v{a+k}")
            if n==0: E(f"v_or_b32 v{t}, v{a}, v{a+1}")
            else: E(f"v_or3_b32 v{t}, v{a}, v{a+1}, v{t}")
            E(f"v_or3_b32 v{t}, v{a+2}, v{a+3}, v{t}")
        E(f"v_and_b32 v{t}, {hex((1<<bits)-1)}, v{t}")
        E(f"v_cmp_ne_u32 vcc, 0, v{t}")
    pollid=[0]
    def poll(loads, chk, masked, sleep=0):
        k=pollid[0]; pollid[0]+=1
        if not masked and "nog" in abl: return
        if not masked and "once" in abl:
            for l in loads: E(l)
            E("s_waitcnt vmcnt(0)"); E.vm=[]; return
        E(f"s_mov_b32 s50, {SPIN}")
        E.label(f"L_poll{k}")
        for l in loads: E(l)
        E("s_waitcnt vmcnt(0)"); E.vm=[]
        chk()
        E(f"s_cbranch_vccz L_pollx{k}")
        if masked=="quad": E("s_wqm_b64 exec, vcc")
        elif masked=="col":
            E("s_or_b32 s29, vcc_lo, vcc_hi"); E("s_lshr_b32 s35, s29, 16"); E("s_or_b32 s29, s29, s35"); E("s_and_b32 s29, s29, 0xffff")
            E("s_mul_i32 exec_lo, s29, 0x10001"); E("s_mov_b32 exec_hi, exec_lo")
        if sleep: E(f"s_sleep {sleep}")
        E("s_sub_u32 s50, s50, 1"); E(f"s_cbranch_scc0 L_poll{k}")
        E.label(f"L_pollx{k}")
        if masked: E("s_mov_b64 exec, -1")
    def lds_wait(off, t, name, sleep):
        E(f"s_mov_b32 s50, {SPIN*4}"); E(f"v_mov_b32 v{t}, 0")
        E.label(name)
        E(f"ds_read_b32 v{t+1}, v{t} offset:{off}"); E("s_waitcnt lgkmcnt(0)")
        E(f"v_cmp_ne_u32 vcc, 0, v{t+1}"); E(f"s_cbranch_vccnz {name}x")
        E(f"s_sleep {sleep}"); E("s_sub_u32 s50, s50, 1"); E(f"s_cbranch_scc0 {name}")
        E.label(name+"x")
    def selectors(sel, t):
        E(f"v_and_b32 v{t}, 1, v0"); E(f"v_cmp_eq_u32 vcc, 1, v{t}")
        E(f"v_mov_b32 v{t+1}, 0x0c0c0100"); E(f"v_mov_b32 v{t+2}, 0x01000c0c"); E(f"v_cndmask_b32 v{t+1}, v{t+1}, v{t+2}, vcc")
        E(f"v_mov_b32 v{t+2}, 0x0c0c0302"); E(f"v_mov_b32 v{t+3}, 0x03020c0c"); E(f"v_cndmask_b32 v{t+2}, v{t+2}, v{t+3}, vcc")
        E(f"v_bfe_u32 v{t}, v0, 3, 1"); E(f"v_bfe_u32 v{t+3}, v0, 1, 1"); E(f"v_lshl_add_u32 v{t}, v{t}, 1, v{t+3}")
        E(f"v_mov_b32 v{t+3}, 0x0c0c0c0c")
        for k in range(4):
            E(f"v_cmp_eq_u32 vcc, {k}, v{t}")
            E(f"v_cndmask_b32 v{sel+2*k}, v{t+3}, v{t+1}, vcc"); E(f"v_cndmask_b32 v{sel+2*k+1}, v{t+3}, v{t+2}, vcc")
    def buildA(dst, pk, par, sel):
        for k in range(4): E(f"v_perm_b32 v{dst+k}, v{pk}, v{pk}, v{sel+2*k+par}")
    def rbf(d, s):
        E(f"v_cvt_pk_bf16_f32 v{d}, v{s}, v{s}"); E(f"v_and_b32 v{d}, 0xffff0000, v{d}")
    def srd(base, size):
        E(f"s_mov_b32 s{base+2}, {hex(size)}"); E(f"s_mov_b32 s{base+3}, 0x20000")
    def kappa():
        if mode=="split":
            E("s_and_b32 s41, s2, 3"); E("s_lshr_b32 s42, s2, 2")
        else:
            E("s_bfe_u32 s41, s2, 0x20003"); E("s_and_b32 s42, s2, 7"); E("s_lshl_b32 s42, s42, 3"); E("s_lshr_b32 s29, s2, 5"); E("s_or_b32 s42, s42, s29")

    E("s_load_dwordx2 s[8:9], s[0:1], 8")
    E("s_load_dwordx2 s[16:17], s[0:1], 88")
    stamp(0)
    E("v_lshrrev_b32 v3, 6, v0")
    E("s_cmp_ge_u32 s2, 256"); E("s_cbranch_scc1 L_end0")
    E("v_readfirstlane_b32 s3, v3")
    E("v_and_b32 v0, 63, v0")
    E("s_mov_b32 s51, 0")
    srd(16, WS_SIZE)
    if mode=="split": E("s_lshr_b32 s6, s2, 4"); E("s_and_b32 s7, s2, 15")
    else: E("s_and_b32 s6, s2, 15"); E("s_lshr_b32 s7, s2, 4")
    E("s_cmp_ge_u32 s3, 4"); E("s_cbranch_scc1 L_helper")

    vK,vV,vM0,vM1,vMX,vL,vQ=1,2,4,5,6,7,8
    D=[12,16,20,24]; T=[28,29,30,31]; X=[32,34]; ACC=36; S=44; RING0=76; NSLOT=45
    SEL=216; PA=226; OA=227; MH=230; WA=231; U0=232; U1=236; O=240; PK=244; CT=246
    E("s_lshl_b32 s26, s6, 23"); E("s_lshl_b32 s29, s3, 12"); E("s_or_b32 s26, s26, s29")
    k=0
    while k<4:
        n=1
        while k+n<4 and sbits[k+n]==sbits[k]+n: n+=1
        E(f"s_bfe_u32 s29, s7, {hex((n<<16)|k)}"); E(f"s_lshl_b32 s29, s29, {sbits[k]}"); E("s_or_b32 s26, s26, s29"); k+=n
    E("s_mov_b32 s28, s26")
    E("v_and_b32 v1, 3, v0"); E("v_lshlrev_b32 v1, 4, v1"); E("v_lshrrev_b32 v3, 4, v0"); E("v_lshl_add_u32 v1, v3, 6, v1")
    E("v_bfe_u32 v3, v0, 2, 2"); E("v_lshl_add_u32 v1, v3, 8, v1")
    srd(8, 0x8000000)
    E("s_waitcnt lgkmcnt(0)")
    seq=[('K',n) for n in range(128)]+[('V',n) for n in range(128)]+[('W',n) for n in range(4)]
    free=list(range(NSLOT)); slot={}
    reserve=[False]
    RES=set(range((SEL-RING0)//4, NSLOT))
    def release(tag): free.append(slot[tag])
    def issue(tag):
        cand=[s for s in free if not (reserve[0] and s in RES)]
        assert cand, ("ring exhausted",tag)
        s=cand[0]; free.remove(s); slot[tag]=s; r=RING0+4*s
        kind,n=tag
        if kind=='K': E(f"buffer_load_dwordx4 v[{r}:{r+3}], v{vK}, s[8:11], s28 offen offset:{(n&3)*1024} nt",tag)
        elif kind=='V': E(f"buffer_load_dwordx4 v[{r}:{r+3}], v{vV}, s[12:15], s28 offen offset:{(n&3)*1024} nt",tag)
        else: E(f"buffer_load_dwordx4 v[{r}:{r+3}], v{WA}, s[20:23], s30 offen offset:{n*1024} nt",tag)
        if kind in 'KV' and (n&3)==3 and tag!=('V',127):
            E(f"s_or_b32 s28, s26, {hex(spread(((n>>2)+1)&31,tbits))}")
    N0=pace[0]
    for i in range(N0): issue(seq[i])
    E("s_load_dwordx2 s[12:13], s[0:1], 16"); E("s_load_dwordx2 s[20:21], s[0:1], 32")
    E("s_setprio 2")
    E("s_barrier")
    E("s_branch L_stream")
    svm=list(E.vm); E.reset()
    E.label("L_end0"); E("s_endpgm"); E.reset()

    E.label("L_helper")
    E("v_mov_b32 v4, 0"); E("v_lshlrev_b32 v2, 2, v0"); E(f"ds_write_b32 v2, v4 offset:0")
    E("s_load_dwordx2 s[24:25], s[0:1], 0"); E("s_load_dwordx2 s[4:5], s[0:1], 24"); E("s_load_dwordx4 s[52:55], s[0:1], 48"); E("s_load_dwordx4 s[56:59], s[0:1], 64")
    srd(24,2048); E("s_mov_b32 s23, 0x20000")
    E("s_cmp_eq_u32 s3, 4"); E("s_cbranch_scc1 L_h0")
    E("s_waitcnt lgkmcnt(0)"); E("s_barrier")
    E("s_cmp_eq_u32 s3, 7"); E("s_cbranch_scc1 L_h3")
    E("s_cmp_eq_u32 s3, 5"); E("s_cbranch_scc1 L_h1")
    E("s_branch L_h2"); E.reset()
    E.label("L_h0")
    E("s_and_b32 s29, s2, 7"); E("s_lshr_b32 s30, s2, 6"); E("s_bfe_u32 s31, s2, 0x20004")
    E("s_lshl_b32 s32, s29, 2"); E("s_add_u32 s32, s32, s30")
    E("s_lshl_b32 s30, s30, 3"); E("s_add_u32 s29, s29, s30")
    E("s_cmp_ge_u32 s29, 14"); E("s_cselect_b32 s30, 14, 0"); E("s_cselect_b32 s35, 1024, 0"); E("s_sub_u32 s30, s29, s30")
    E("s_lshl_b32 s34, s30, 13"); E("s_add_u32 s34, s34, s35"); E("s_lshl_b32 s35, s31, 7"); E("s_add_u32 s34, s34, s35"); E(f"s_add_u32 s34, s34, {WS_GP}")
    E("s_lshl_b32 s33, s32, 11"); E("s_lshl_b32 s35, s31, 9"); E("s_add_u32 s33, s33, s35"); E(f"s_add_u32 s33, s33, {WS_QP}")
    E("v_lshlrev_b32 v2, 4, v0"); E("v_lshrrev_b32 v3, 4, v0"); E("v_and_b32 v1, 15, v0"); E("v_lshlrev_b32 v1, 4, v1")
    E("s_bitcmp1_b32 s2, 3")
    E("s_cselect_b32 s34, s34, s33"); E("s_cselect_b32 s32, s30, s32"); E("s_cselect_b32 s33, 3584, 0"); E("s_cselect_b32 s43, s29, 0")
    E(f"s_cselect_b32 s22, {512*3584}, 0"); E("s_cselect_b32 s44, 11, 6"); E("s_cselect_b32 s45, 9, 16"); E("s_cselect_b32 s46, 6, 8")
    E("s_bitcmp0_b32 s2, 3"); E("s_cselect_b32 s33, 8192, s33"); E("s_cselect_b32 s22, 0x400000, s22")
    E("s_lshl_b32 s28, s32, 8"); E("s_lshl_b32 s30, s33, 7"); E("s_mul_i32 s30, s30, s31"); E("s_add_u32 s28, s28, s30")
    E("s_lshl_b32 s30, s33, 5"); E("v_mad_u32_u24 v1, v3, s30, v1")
    E("s_waitcnt lgkmcnt(0)")
    E("buffer_load_dwordx4 v[4:7], v2, s[24:27], 0 offen"); E("buffer_load_dwordx4 v[8:11], v2, s[24:27], 0 offen offset:1024")
    epoch_load(78)
    E("s_barrier")
    E("s_cmp_ge_u32 s29, 14"); E("s_cselect_b32 s20, s54, s52"); E("s_cselect_b32 s21, s55, s53")
    E("s_bitcmp0_b32 s2, 3"); E("s_cselect_b32 s20, s4, s20"); E("s_cselect_b32 s21, s5, s21")
    E("s_cmp_ge_u32 s43, 28"); E("s_cbranch_scc1 L_h0skip")
    if "now" in abl: E("s_mov_b32 s22, 0")
    nfirst = 32 if hwin is None else hwin
    def wload(j): E(f"buffer_load_dwordx4 v[{128+4*j}:{131+4*j}], v1, s[20:23], s28 offen nt",('w',j)); E("s_add_u32 s28, s28, s33")
    for j in range(nfirst): wload(j)
    E("v_and_b32 v76, 3, v0"); E("v_lshlrev_b32 v76, 4, v76"); E("v_bfe_u32 v28, v0, 2, 2"); E("v_lshl_add_u32 v76, v28, s44, v76")
    E("v_bfe_u32 v28, v0, 4, 1"); E("v_lshl_add_u32 v76, v28, s45, v76"); E("v_lshrrev_b32 v28, 5, v0"); E("v_lshl_add_u32 v76, v28, s46, v76")
    selectors(40,28)
    E.safe()
    E.wait_n(nfirst)
    stamp(1)
    for b in range(2):
        for k in range(4):
            E(f"v_lshlrev_b32 v{12+8*b+2*k}, 16, v{4+4*b+k}"); E(f"v_and_b32 v{13+8*b+2*k}, 0xffff0000, v{4+4*b+k}")
    def red2(a,c,t):
        E(f"v_permlane32_swap_b32 v{a}, v{c}"); E(f"v_add_f32 v{a}, v{a}, v{c}")
        E(f"v_mov_b32 v{t}, v{a}"); E(f"v_permlane16_swap_b32 v{t}, v{a}"); E(f"v_add_f32 v{a}, v{a}, v{t}")
        for m in (1,2,4,8): E(f"v_add_f32_dpp v{a}, v{a}, v{a} row_ror:{m} {DPP}")
        E(f"v_mul_f32 v{a}, 0x3b000000, v{a}")
    for b in range(2): E(f"v_add_f32 v{28+b}, v{12+8*b}, v{13+8*b}")
    for k in range(2,8):
        for b in range(2): E(f"v_add_f32 v{28+b}, v{28+b}, v{12+8*b+k}")
    red2(28,29,30)
    E("v_readlane_b32 s52, v28, 0"); E("v_readlane_b32 s53, v28, 32")
    rbf(31,28)
    E.safe()
    for k in range(8):
        for b in range(2):
            E(f"v_subrev_f32 v{32+b}, s{52+b}, v{12+8*b+k}")
            if k==0: E(f"v_mul_f32 v{34+b}, v{32+b}, v{32+b}")
            else: E(f"v_fmac_f32 v{34+b}, v{32+b}, v{32+b}")
    red2(34,35,30)
    rbf(34,34); E("v_add_f32 v34, 0x3727c5ac, v34"); rbf(34,34); E("v_sqrt_f32 v34, v34"); rbf(34,34); E("v_rcp_f32 v34, v34")
    E("v_readlane_b32 s54, v31, 0"); E("v_readlane_b32 s55, v31, 32"); E("v_readlane_b32 s56, v34, 0"); E("v_readlane_b32 s57, v34, 32")
    E.safe()
    for b in range(2):
        for k in range(8): E(f"v_subrev_f32 v{12+8*b+k}, s{54+b}, v{12+8*b+k}")
        for k in range(4): E(f"v_cvt_pk_bf16_f32 v{4+4*b+k}, v{12+8*b+2*k}, v{13+8*b+2*k}")
        for k in range(4):
            E(f"v_lshlrev_b32 v{12+8*b+2*k}, 16, v{4+4*b+k}"); E(f"v_and_b32 v{13+8*b+2*k}, 0xffff0000, v{4+4*b+k}")
        for k in range(8): E(f"v_mul_f32 v{12+8*b+k}, s{56+b}, v{12+8*b+k}")
        for k in range(4): E(f"v_cvt_pk_bf16_f32 v{4+4*b+k}, v{12+8*b+2*k}, v{13+8*b+2*k}")
        E(f"ds_write_b128 v2, v[{4+4*b}:{7+4*b}] offset:{L_XN+1024*b}")
        E.safe()
    E("v_bfe_u32 v28, v0, 2, 1"); E("v_lshlrev_b32 v28, 10, v28"); E("v_lshrrev_b32 v29, 4, v0"); E("v_lshl_add_u32 v28, v29, 6, v28")
    E("s_lshl_b32 s30, s31, 8"); E("v_add_u32 v28, s30, v28")
    for k in range(4): E(f"ds_read_b128 v[{48+4*k}:{51+4*k}], v28 offset:{L_XN+16*k}")
    E("v_mov_b32 v77, 0xfffffff0")
    tag_from(78); tag_bits(4)
    E("s_waitcnt lgkmcnt(0)")
    stamp(2)
    for j in range(32):
        a=64+4*(j&1)
        buildA(a, 48+(j>>1), j&1, 40)
        E.wait_tag(('w',j))
        if j+nfirst<32: wload(j+nfirst)
        E(f"v_mfma_f32_16x16x32_bf16 v[72:75], v[{a}:{a+3}], v[{128+4*j}:{131+4*j}], "+("0" if j==0 else "v[72:75]"))
        E.safe()
    tag_insert(72,77)
    if "nost" not in abl: E("buffer_store_dwordx4 v[72:75], v76, s[16:19], s34 offen "+("" if "plainst" in abl else "sc1"))
    stamp(3)
    E("s_branch L_red"); E.reset()
    E.label("L_h0skip")
    E("s_waitcnt vmcnt(0)"); tag_from(78)
    E("s_branch L_red"); E.reset()
    E.safe()
    E.label("L_h1")
    epoch_load(44)
    E("s_lshl_b32 s28, s6, 13"); E(f"s_add_u32 s28, s28, {WS_QP}")
    E("v_and_b32 v3, 3, v0"); E("v_lshlrev_b32 v3, 4, v3")
    E("v_lshrrev_b32 v2, 4, v0"); E("v_lshl_add_u32 v2, v2, 6, v3"); E("v_bfe_u32 v3, v0, 2, 2"); E("v_lshl_add_u32 v2, v3, 11, v2")
    E("s_waitcnt vmcnt(0)"); tag_from(44); tag_bits(4)
    lds_wait(L_FLAG+8, 4, "L_trA", 2)
    stamp(1)
    E.safe()
    poll([f"buffer_load_dwordx4 v[{8+4*k}:{11+4*k}], v2, s[16:19], s28 offen offset:{k*256} sc1" for k in range(8)],
         lambda: check([8+4*k for k in range(8)],4,4), False, sleep=8)
    if dbg: E("s_mov_b32 s76, s50")
    E.safe()
    for rho in range(1,4):
        for c in range(8): E(f"v_add_f32 v{8+c}, v{8+c}, v{8+8*rho+c}")
    for c in range(4): E(f"v_cvt_pk_bf16_f32 v{40+c}, v{8+2*c}, v{9+2*c}")
    E("v_lshlrev_b32 v3, 4, v0"); E(f"ds_write_b128 v3, v[40:43] offset:{L_Q}")
    E("v_mov_b32 v4, 0"); E("v_mov_b32 v6, 1"); E("v_mov_b32 v7, s36"); E("s_waitcnt lgkmcnt(0)"); E(f"ds_write_b64 v4, v[6:7] offset:{L_FLAG}")
    stamp(2)
    E.label("L_red"); E.reset()
    E("s_sub_u32 s29, s3, 4"); E("s_lshl_b32 s30, s29, 1")
    E("v_lshrrev_b32 v1, 5, v0"); E("v_add_u32 v1, s30, v1")
    E("v_lshlrev_b32 v2, 3, v1")
    E(f"s_mov_b32 s50, {SPIN*4}")
    E.label("L_mlw")
    for s_ in range(4): E(f"ds_read_b64 v[{8+2*s_}:{9+2*s_}], v2 offset:{L_ML+32*s_}")
    E("s_waitcnt lgkmcnt(0)")
    E("v_min_u32 v4, v9, v11"); E("v_min3_u32 v4, v4, v13, v15"); E("v_cmp_eq_u32 vcc, 0, v4")
    E("s_cbranch_vccz L_mlx")
    E("s_sleep 16"); E("s_sub_u32 s50, s50, 1"); E("s_cbranch_scc0 L_mlw")
    E.label("L_mlx")
    E.safe()
    stamp(4)
    E("v_max_f32 v16, v8, v10"); E("v_max3_f32 v16, v16, v12, v14")
    for s_ in range(4): E(f"v_sub_f32 v{20+s_}, v{8+2*s_}, v16")
    for s_ in range(4): E(f"v_mul_f32 v{20+s_}, {hex(LOG2E)}, v{20+s_}")
    for s_ in range(4): E(f"v_exp_f32 v{20+s_}, v{20+s_}")
    E("v_mul_f32 v17, v20, v9")
    for s_ in range(1,4): E(f"v_fmac_f32 v17, v{20+s_}, v{9+2*s_}")
    E("v_log_f32 v50, v17"); E("v_rcp_f32 v17, v17"); E(f"v_fmac_f32 v50, {hex(LOG2E)}, v16")
    for s_ in range(4): E(f"v_mul_f32 v{20+s_}, v{20+s_}, v17")
    E("v_mov_b32 v51, s36")
    E("s_lshl_b32 s34, s6, 4"); E("s_add_u32 s34, s34, s7"); E("s_lshl_b32 s34, s34, 11"); E(f"s_add_u32 s34, s34, {WS_OP}")
    E("v_lshlrev_b32 v26, 4, v0"); E("s_lshl_b32 s35, s29, 10"); E("v_add_u32 v26, s35, v26")
    stamp(5)
    E.safe()
    E("s_setprio 3")
    E("s_barrier")
    for s_ in range(4): E(f"ds_read_b128 v[{32+4*s_}:{35+4*s_}], v26 offset:{L_O+2048*s_}")
    for s_ in range(4):
        E(f"s_waitcnt lgkmcnt({3-s_})")
        for c in range(4): E((f"v_mul_f32 v{28+c}, v20, v{32+c}") if s_==0 else f"v_fmac_f32 v{28+c}, v{20+s_}, v{32+4*s_+c}")
    E("v_cvt_pk_bf16_f32 v48, v28, v29"); E("v_cvt_pk_bf16_f32 v49, v30, v31")
    if "notail" not in abl: E("buffer_store_dwordx4 v[48:51], v26, s[16:19], s34 offen sc1")
    stamp(6)
    finish()
    E.safe()
    E.label("L_h3")
    E("s_mov_b32 s20, s58"); E("s_mov_b32 s21, s59"); E("s_mov_b32 s22, 2048")
    if warm:
        if warm!="walk":
            E("s_getpc_b64 s[4:5]"); E.label("L_pc")
            E(f"s_sub_u32 s4, s4, L_pc-{KN}"); E("s_subb_u32 s5, s5, 0")
            E("s_bfe_u32 s29, s2, 0x40003"); E("s_lshl_b32 s29, s29, 11"); E("v_lshlrev_b32 v1, 7, v0"); E("v_add_u32 v1, s29, v1")
            E(f"v_min_u32 v1, L_end-{KN}, v1")
            E("s_mov_b64 exec, 0xffff"); E("global_load_dword v2, v1, s[4:5]"); E("s_mov_b64 exec, -1")
            E("s_waitcnt vmcnt(0)"); E.vm=[]
        E("s_mov_b32 s51, 1"); E("s_branch L_pad0")
        E.label("L_padret"); E("s_mov_b32 s51, 0")
    stamp(1)
    kappa()
    if mode=="split":
        E("s_cmp_ge_u32 s42, 16"); E("s_cbranch_scc1 L_fin"); E("s_mov_b32 s30, s42")
    else:
        E("s_and_b32 s30, s42, 3"); E("s_cmp_lg_u32 s30, 0"); E("s_cbranch_scc1 L_fin"); E("s_lshr_b32 s30, s42, 2")
    epoch_load(50)
    E("s_lshl_b32 s44, s41, 16"); E("s_lshl_b32 s31, s30, 6"); E("s_add_u32 s44, s44, s31"); E(f"s_add_u32 s44, s44, {WS_YP}")
    for z in range(1,4): E(f"s_add_u32 s{44+z}, s44, {z*16384}")
    E("v_lshrrev_b32 v1, 2, v0"); E("v_lshlrev_b32 v1, 10, v1"); E("v_and_b32 v2, 3, v0"); E("v_lshlrev_b32 v2, 4, v2"); E("v_add_u32 v1, v1, v2")
    E("s_bfe_u32 s32, s30, 0x10002"); E("s_lshl_b32 s32, s32, 10"); E("s_lshl_b32 s33, s41, 8"); E("s_add_u32 s32, s32, s33")
    E("s_and_b32 s33, s30, 3"); E("s_lshl_b32 s33, s33, 6"); E("s_add_u32 s32, s32, s33"); E("s_lshr_b32 s33, s30, 3"); E("s_lshl_b32 s33, s33, 3"); E("s_add_u32 s32, s32, s33")
    E("v_lshrrev_b32 v3, 4, v0"); E("v_lshl_add_u32 v2, v3, 1, v2")
    E("buffer_load_ushort v30, v2, s[24:27], s32 offen")
    E("s_waitcnt vmcnt(0)"); E.vm=[]
    tag_from(50); tag_bits(8)
    E("v_lshlrev_b32 v30, 16, v30"); E("v_mov_b32 v32, s36"); E("v_mov_b32 v34, 0")
    stamp(2)
    E.safe()
    E("s_setprio 3")
    E("s_barrier"); E("s_barrier")
    if "notail" in abl or "nopolls" in abl: E("s_branch L_fin")
    stamp(3)
    poll([f"buffer_load_dwordx4 v[{8+4*z}:{11+4*z}], v1, s[16:19], s{44+z} offen sc1" for z in range(4)], lambda: check([8,12,16,20],4,8), "quad")
    stamp(4)
    for c in range(4): E(f"v_add_f32 v{8+c}, v{8+c}, v{12+c}")
    for c in range(4): E(f"v_add_f32 v{16+c}, v{16+c}, v{20+c}")
    for c in range(4): E(f"v_add_f32 v{8+c}, v{8+c}, v{16+c}")
    E("v_permlane32_swap_b32 v8, v10"); E("v_permlane32_swap_b32 v9, v11")
    E("v_add_f32 v8, v8, v10"); E("v_add_f32 v9, v9, v11")
    E("v_permlane16_swap_b32 v8, v9"); E("v_add_f32 v8, v8, v9")
    E(f"v_add_f32_dpp v8, v8, v8 row_ror:4 {DPP}"); E(f"v_add_f32_dpp v8, v8, v8 row_ror:8 {DPP}")
    E("v_add_f32 v8, v8, v30"); E("v_cvt_pk_bf16_f32 v8, v8, v8")
    E("s_mov_b32 exec_lo, 0x000f000f"); E("s_mov_b32 exec_hi, 0x000f000f")
    E("buffer_store_short v8, v2, s[20:23], s32 offen")
    E("s_cmp_lg_u32 s2, 0"); E("s_cbranch_scc1 L_fin2")
    E("s_mov_b64 exec, 1")
    E(f"buffer_store_dword v32, v34, s[16:19], 0 offen offset:{WS_EPOCH} sc1")
    E.label("L_fin2")
    stamp(5)
    E.label("L_fin")
    finish()
    E.safe()
    E.label("L_h2")
    E("s_mov_b32 s20, s56"); E("s_mov_b32 s21, s57"); E(f"s_mov_b32 s22, {0 if 'nod' in abl else 1792*1024}")
    kappa()
    for c in range(4): E(f"v_mov_b32 v{36+c}, 0")
    E("s_cmp_ge_u32 s42, 56"); E("s_cbranch_scc1 L_h2w")
    epoch_load(50)
    selectors(40,4)
    E.safe()
    E("s_lshl_b32 s28, s42, 11"); E(f"s_add_u32 s28, s28, {WS_GP}")
    E("v_and_b32 v1, 15, v0"); E("v_lshrrev_b32 v3, 4, v0"); E("v_lshlrev_b32 v2, 4, v1"); E("v_lshlrev_b32 v1, 7, v1"); E("v_lshl_add_u32 v1, v3, 4, v1")
    E("v_lshl_add_u32 v2, v3, 13, v2"); E("v_add_u32 v48, 4096, v2")
    E("s_lshl_b32 s31, s42, 15"); E("s_lshl_b32 s32, s41, 8"); E("s_add_u32 s31, s31, s32")
    E("s_waitcnt vmcnt(0)"); E.vm=[]; tag_from(50); tag_bits(4)
    lds_wait(L_FLAG+12, 4, "L_trB", 16)
    poll(["buffer_load_dwordx4 v[8:11], v1, s[16:19], s28 offen sc1","buffer_load_dwordx4 v[12:15], v1, s[16:19], s28 offen offset:64 sc1"], lambda: check([8,12],4,4), False, sleep=32)
    stamp(1)
    def dload(j): E(f"buffer_load_dwordx4 v[{64+4*j}:{67+4*j}], v{2 if j<4 else 48}, s[20:23], s31 offen offset:{(j&3)*1024} nt",('d',j))
    dload(0); dload(1)
    E.safe()
    for m in ("quad_perm:[1,0,3,2]","quad_perm:[2,3,0,1]"):
        for c in range(8): E(f"v_add_f32_dpp v{8+c}, v{8+c}, v{8+c} {m} {DPP}")
    for c in range(8): rbf(8+c,8+c)
    E.safe()
    E("s_mov_b32 s33, 0x3d372713")
    for c in range(8): E(f"v_mul_f32 v{16+c}, v{8+c}, v{8+c}")
    for c in range(8): E(f"v_mul_f32 v{16+c}, v{16+c}, v{8+c}")
    for c in range(8): E(f"v_fma_f32 v{16+c}, v{16+c}, s33, v{8+c}")
    for c in range(8): E(f"v_mul_f32 v{16+c}, 0xc0135761, v{16+c}")
    E.safe()
    for c in range(8): E(f"v_exp_f32 v{16+c}, v{16+c}")
    for c in range(8): E(f"v_add_f32 v{16+c}, 1.0, v{16+c}")
    for c in range(8): E(f"v_rcp_f32 v{16+c}, v{16+c}")
    for c in range(8): E(f"v_mul_f32 v{16+c}, v{16+c}, v{8+c}")
    E.safe()
    for c in range(8): rbf(16+c,16+c)
    E("s_mov_b32 vcc_lo, 0xff00ff00"); E("s_mov_b32 vcc_hi, 0xff00ff00")
    for c in range(8): E(f"v_cndmask_b32 v{8+c}, v{16+c}, v{8+c}, vcc")
    E.safe()
    for c in range(8): E(f"v_mul_f32_dpp v{16+c}, v{8+c}, v{8+c} row_ror:8 {DPP}")
    for c in range(4): E(f"v_cvt_pk_bf16_f32 v{24+c}, v{16+2*c}, v{17+2*c}")
    for j in range(8):
        a=28+4*(j&1); buildA(a,24+(j>>1),j&1,40); E.wait_tag(('d',j))
        if j+2<8: dload(j+2)
        E(f"v_mfma_f32_16x16x32_bf16 v[36:39], v[{a}:{a+3}], v[{64+4*j}:{67+4*j}], v[36:39]")
        E.safe()
    E.label("L_h2w")
    E("v_lshlrev_b32 v3, 4, v0")
    E(f"ds_write_b128 v3, v[36:39] offset:{L_Y}"); E("s_waitcnt lgkmcnt(0)")
    stamp(2)
    finish()
    E.safe()

    E.label("L_stream"); E.vm=svm
    def setup1():
        srd(12,0x8000000); srd(20,0 if "nowo" in abl else 0x400000)
        E(f"v_lshlrev_b32 v{vV}, 4, v0")
        for k in range(1,4):
            m=0x11111111<<k
            E(f"s_mov_b32 s{42+2*k}, {hex(m)}"); E(f"s_mov_b32 s{43+2*k}, {hex(m)}")
        E("v_mov_b32 v3, 0xffff0000"); E(f"v_mov_b32 v{vM0}, 0xffff")
        E(f"v_cndmask_b32 v{vM0}, v{vM0}, v3, s[44:45]"); E(f"v_cndmask_b32 v{vM1}, 0, v{vM0}, s[46:47]"); E(f"v_cndmask_b32 v{vM1}, v{vM1}, v3, s[48:49]")
        E(f"v_cndmask_b32 v{vM0}, v{vM0}, 0, s[46:47]"); E(f"v_cndmask_b32 v{vM0}, v{vM0}, 0, s[48:49]")
        E(f"v_mov_b32 v{vMX}, 0xff800000")
        for k in range(8): E(f"v_mov_b32 v{ACC+k}, 0")
    def trigger(off):
        E("v_mov_b32 v3, 0"); E("s_mov_b64 exec, 1"); E(f"ds_write_b32 v3, v{vM0} offset:{off}"); E("s_mov_b64 exec, -1")
    def qready():
        stamp(1)
        E(f"s_mov_b32 s50, {SPIN*8}"); E("v_mov_b32 v3, 0")
        E.label("L_qw")
        E(f"ds_read_b64 v[{T[0]}:{T[1]}], v3 offset:{L_FLAG}"); E(f"ds_read_b128 v[{vQ}:{vQ+3}], v{vV} offset:{L_Q}")
        E("s_waitcnt lgkmcnt(0)")
        E(f"v_cmp_ne_u32 vcc, 0, v{T[0]}"); E("s_cbranch_vccnz L_qx")
        E("s_sub_u32 s50, s50, 1"); E("s_cbranch_scc0 L_qw")
        E.label("L_qx")
        E(f"v_readfirstlane_b32 s36, v{T[1]}")
        stamp(2)
    dnext=[0]; pend=[]
    def k_reduce(items):
        tt={n:(T[2*i],T[2*i+1]) for i,(n,d) in enumerate(items)}
        for n,d in items:
            a,b=tt[n]; E(f"v_mov_b32_dpp v{a}, v{d} quad_perm:[0,0,0,0] {DPP}"); E(f"v_mov_b32_dpp v{b}, v{d+2} quad_perm:[2,2,2,2] {DPP}")
        for n,d in items:
            a,b=tt[n]; E(f"v_add_f32_dpp v{a}, v{d+1}, v{a} quad_perm:[1,1,1,1] {DPP}"); E(f"v_add_f32_dpp v{b}, v{d+3}, v{b} quad_perm:[3,3,3,3] {DPP}")
        for n,d in items:
            a,b=tt[n]; t=n>>2; j=n&3
            if j==0: E(f"v_add_f32 v{S+t}, v{a}, v{b}")
            else:
                E(f"v_add_f32 v{a}, v{a}, v{b}"); E(f"v_cndmask_b32 v{S+t}, v{S+t}, v{a}, s[{42+2*j}:{43+2*j}]")
            if j==3:
                rbf(S+t,S+t); E(f"v_mul_f32 v{S+t}, 0x3db504f3, v{S+t}"); rbf(S+t,S+t); E(f"v_max_f32 v{vMX}, v{vMX}, v{S+t}")
    def k_consume(ns):
        new=[]
        for n in ns:
            d=D[dnext[0]%4]; dnext[0]+=1; r=RING0+4*slot[('K',n)]
            E(f"v_mfma_f32_16x16x32_bf16 v[{d}:{d+3}], v[{r}:{r+3}], v[{vQ}:{vQ+3}], 0"); release(('K',n)); new.append((n,d))
        if pend: k_reduce(list(pend))
        pend[:]=new
    def allred(op, v, t):
        E(f"{op}_dpp v{v}, v{v}, v{v} quad_perm:[1,0,3,2] {DPP}"); E(f"{op}_dpp v{v}, v{v}, v{v} quad_perm:[2,3,0,1] {DPP}")
        E(f"v_mov_b32 v{t}, v{v}"); E(f"v_permlane16_swap_b32 v{t}, v{v}"); E(f"{op} v{v}, v{v}, v{t}")
        E(f"v_mov_b32 v{t}, v{v}"); E(f"v_permlane32_swap_b32 v{t}, v{v}"); E(f"{op} v{v}, v{v}, v{t}")
    def sm_head():
        k_reduce(list(pend)); pend[:]=[]
        stamp(3)
        allred("v_max_f32", vMX, 3); E(f"v_mov_b32 v{vL}, 0")
    def sm_chunk(ts):
        for t in ts: E(f"v_sub_f32 v{S+t}, v{S+t}, v{vMX}")
        for t in ts: E(f"v_mul_f32 v{S+t}, {hex(LOG2E)}, v{S+t}")
        for t in ts: E(f"v_exp_f32 v{S+t}, v{S+t}")
        for t in ts: E(f"v_add_f32 v{vL}, v{vL}, v{S+t}")
        for t in ts: E(f"v_cvt_pk_bf16_f32 v{S+t}, v{S+t}, v{S+t}")
    def sm_tail():
        allred("v_add_f32", vL, 3)
        E(f"v_lshlrev_b32 v3, 1, v0"); E("s_lshl_b32 s29, s3, 5"); E("v_add_u32 v3, s29, v3")
        E("s_mov_b64 exec, 0x1111"); E(f"ds_write_b64 v3, v[{vMX}:{vL}] offset:{L_ML}"); E("s_mov_b64 exec, -1")
        stamp(4)
    xn=[0]
    def v_consume(n):
        x=X[xn[0]%2]; xn[0]+=1; t=n>>2; j=n&3; r=RING0+4*slot[('V',n)]
        E(f"v_and_b32_dpp v{x}, v{S+t}, v{vM0} quad_perm:[{j},{j},{j},{j}] {DPP}")
        E(f"v_and_b32_dpp v{x+1}, v{S+t}, v{vM1} quad_perm:[{j},{j},{j},{j}] {DPP}")
        return (x,r,n)
    def v_mfma(x,r,n):
        E(f"v_mfma_f32_16x16x16_bf16 v[{ACC}:{ACC+3}], v[{x}:{x+1}], v[{r}:{r+1}], v[{ACC}:{ACC+3}]")
        E(f"v_mfma_f32_16x16x16_bf16 v[{ACC+4}:{ACC+7}], v[{x}:{x+1}], v[{r+2}:{r+3}], v[{ACC+4}:{ACC+7}]")
        release(('V',n))
    def tail_setup_a():
        assert all(s in free for s in RES)
        tag_bits(8); selectors(SEL, CT)
    def tail_setup_b():
        kappa()
        E(f"v_bfe_u32 v{CT}, v0, 2, 1"); E(f"v_lshlrev_b32 v{PA}, 18, v{CT}")
        E(f"v_bfe_u32 v{CT}, v0, 3, 1"); E(f"v_lshl_add_u32 v{PA}, v{CT}, 13, v{PA}")
        E(f"v_and_b32 v{CT}, 3, v0"); E(f"v_lshl_add_u32 v{PA}, v{CT}, 11, v{PA}")
        E(f"v_lshrrev_b32 v{CT}, 4, v0"); E(f"v_lshl_add_u32 v{PA}, v{CT}, 4, v{PA}")
        E("s_lshr_b32 s31, s42, 3"); E("s_lshl_b32 s31, s31, 15"); E("s_and_b32 s29, s42, 7"); E("s_lshl_b32 s29, s29, 8"); E("s_add_u32 s31, s31, s29")
        E("s_lshl_b32 s29, s3, 6"); E("s_add_u32 s31, s31, s29"); E(f"s_add_u32 s31, s31, {WS_OP}"); E("s_add_u32 s33, s31, 16384")
        E("s_lshl_b32 s30, s42, 2"); E("s_add_u32 s30, s30, s3"); E("s_lshl_b32 s30, s30, 14"); E("s_lshl_b32 s29, s41, 8"); E("s_add_u32 s30, s30, s29")
        E(f"v_and_b32 v{WA}, 15, v0"); E(f"v_lshlrev_b32 v{WA}, 4, v{WA}"); E(f"v_lshl_add_u32 v{WA}, v{CT}, 12, v{WA}")
        E("s_lshl_b32 s32, s41, 16"); E("s_lshl_b32 s29, s42, 10"); E("s_add_u32 s32, s32, s29"); E(f"s_add_u32 s32, s32, {WS_YP}")
        E(f"v_mov_b32 v{MH}, 0xffffff00")
        E(f"v_lshlrev_b32 v{OA}, 5, v0"); E("s_lshl_b32 s29, s3, 11"); E(f"v_add_u32 v{OA}, s29, v{OA}")
        E("s_lshl_b32 s29, s3, 10"); E(f"v_add_u32 v{vK}, s29, v{vV}")
        for k in range(4): E(f"v_mov_b32 v{D[0]+k}, 0")
    acts=[('q',)]+[('K',n) for n in range(128)]+[('smh',)]+[('smc',list(range(8*c,8*c+8))) for c in range(4)]+[('smt',)]+[('V',n) for n in range(128)]
    ai=0
    def do_actions(step):
        nonlocal ai
        if ai>=len(acts): return
        a=acts[ai]
        if a[0]=='q':
            if step<qstep: return
            qready(); ai+=1; a=acts[ai]
        if a[0]=='K':
            ns=[]
            while len(ns)<cu and acts[ai][0]=='K' and E.landed(acts[ai]) and acts[ai] in slot: ns.append(acts[ai][1]); ai+=1
            if ns: k_consume(ns)
            return
        if a[0]=='smh': sm_head(); ai+=1; return
        if a[0]=='smc': sm_chunk(a[1]); ai+=1; return
        if a[0]=='smt': sm_tail(); ai+=1; return
        if a[0]=='V':
            c=0; st=[]
            while c<2 and ai<len(acts) and acts[ai] in slot and E.landed(acts[ai]):
                st.append(v_consume(acts[ai][1])); ai+=1; c+=1
            for s_ in st: v_mfma(*s_)
    setup1()
    for i in range(N0,len(seq)):
        N=pace[i%len(pace)]
        if tail:
            for (i0,hi) in tail:
                if i>=i0: N=hi
        E.wait_n(N-1)
        issue(seq[i])
        if i==trigA: trigger(L_FLAG+8)
        if i==trigB: trigger(L_FLAG+12)
        if i==100: reserve[0]=True
        do_actions(i)
        if i==170: tail_setup_a()
        if i==172: tail_setup_b()
        E.safe()
    while ai<len(acts):
        a=acts[ai]; assert a[0]=='V'
        st=v_consume(a[1]); E.wait_tag(a); v_mfma(*st); ai+=1
    stamp(5)
    E(f"ds_write_b128 v{OA}, v[{ACC}:{ACC+3}] offset:{L_O}"); E(f"ds_write_b128 v{OA}, v[{ACC+4}:{ACC+7}] offset:{L_O+16}")
    E("s_waitcnt lgkmcnt(0)"); E("s_barrier")
    stamp(6)
    if "notail" in abl or "nopolls" in abl: E("s_branch L_fin")
    C0=D[0]
    E("s_cmp_lg_u32 s3, 0"); E("s_cbranch_scc1 L_noc")
    E(f"ds_read_b128 v[{C0}:{C0+3}], v{vV} offset:{L_Y}")
    E.label("L_noc")
    def chk1():
        E(f"v_cmp_ne_u32 s[34:35], s36, v{U0+3}"); E(f"v_cmp_ne_u32 vcc, s36, v{U1+3}"); E("s_or_b64 vcc, vcc, s[34:35]")
    poll([f"buffer_load_dwordx4 v[{U0}:{U0+3}], v{PA}, s[16:19], s31 offen sc1", f"buffer_load_dwordx4 v[{U1}:{U1+3}], v{PA}, s[16:19], s33 offen sc1"], chk1, "col")
    stamp(7)
    MX=CT; E0=CT+1; E1=CT+2; DEN=CT+3; A_=S+16; B_=S+20
    E(f"v_max_f32 v{MX}, v{U0+2}, v{U1+2}")
    unp=[f"v_lshlrev_b32 v{A_}, 16, v{U0}", f"v_and_b32 v{A_+1}, 0xffff0000, v{U0}", f"v_lshlrev_b32 v{A_+2}, 16, v{U0+1}", f"v_and_b32 v{A_+3}, 0xffff0000, v{U0+1}",
         f"v_lshlrev_b32 v{B_}, 16, v{U1}", f"v_and_b32 v{B_+1}, 0xffff0000, v{U1}", f"v_lshlrev_b32 v{B_+2}, 16, v{U1+1}", f"v_and_b32 v{B_+3}, 0xffff0000, v{U1+1}"]
    RED=("quad_perm:[1,0,3,2]","quad_perm:[2,3,0,1]","row_ror:8")
    for n,m in enumerate(RED):
        E(unp[2*n]); E(unp[2*n+1]); E(f"v_max_f32_dpp v{MX}, v{MX}, v{MX} {m} {DPP}")
    E(f"v_sub_f32 v{E0}, v{U0+2}, v{MX}"); E(f"v_sub_f32 v{E1}, v{U1+2}, v{MX}")
    E(f"v_exp_f32 v{E0}, v{E0}"); E(f"v_exp_f32 v{E1}, v{E1}"); E(unp[6]); E(unp[7])
    E(f"v_add_f32 v{DEN}, v{E0}, v{E1}")
    for k in range(4): E(f"v_mul_f32 v{O+k}, v{E0}, v{A_+k}")
    E(f"v_add_f32_dpp v{DEN}, v{DEN}, v{DEN} {RED[0]} {DPP}")
    for k in range(4): E(f"v_fmac_f32 v{O+k}, v{E1}, v{B_+k}")
    for n,m in enumerate(RED):
        if n<2: E(f"v_add_f32_dpp v{DEN}, v{DEN}, v{DEN} {RED[n+1]} {DPP}")
        else: E(f"v_rcp_f32 v{DEN}, v{DEN}")
        for k in range(4): E(f"v_add_f32_dpp v{O+k}, v{O+k}, v{O+k} {m} {DPP}")
    for k in range(4): E(f"v_mul_f32 v{O+k}, v{O+k}, v{DEN}")
    E(f"v_cvt_pk_bf16_f32 v{PK}, v{O}, v{O+1}"); E(f"v_cvt_pk_bf16_f32 v{PK+1}, v{O+2}, v{O+3}")
    E("s_waitcnt lgkmcnt(0)")
    for j in range(5):
        if j<4: buildA(S+4*j, PK+(j>>1), j&1, SEL)
        if j>0:
            r=RING0+4*slot[('W',j-1)]
            E(f"v_mfma_f32_16x16x32_bf16 v[{C0}:{C0+3}], v[{S+4*j-4}:{S+4*j-1}], v[{r}:{r+3}], v[{C0}:{C0+3}]")
    E("s_cmp_eq_u32 s3, 0"); E("s_cbranch_scc1 L_s0")
    h=list(E.hist)
    E(f"ds_write_b128 v{vK}, v[{C0}:{C0+3}] offset:{L_Y}"); E("s_waitcnt lgkmcnt(0)"); E("s_barrier")
    finish()
    E.label("L_s0"); E.hist=h
    E("s_barrier")
    for k in range(3): E(f"ds_read_b128 v[{S+4*k}:{S+4*k+3}], v{vV} offset:{L_Y+1024*(k+1)}")
    for k in range(3):
        E(f"s_waitcnt lgkmcnt({2-k})")
        for c in range(4): E(f"v_add_f32 v{C0+c}, v{C0+c}, v{S+4*k+c}")
    tag_insert(C0,MH)
    E(f"buffer_store_dwordx4 v[{C0}:{C0+3}], v{vV}, s[16:19], s32 offen sc1")
    stamp(8)
    finish()
    if dbg:
        E.label("L_dbg")
        E("s_memrealtime s[78:79]"); E("s_getreg_b32 s80, hwreg(HW_REG_XCC_ID)")
        E("s_waitcnt lgkmcnt(0)")
        if probe:
            pw,pwave,pk=probe
            E(f"s_cmp_lg_u32 s2, {pw}"); E("s_cbranch_scc1 L_end"); E(f"s_cmp_lg_u32 s3, {pwave}"); E("s_cbranch_scc1 L_end")
            E(f"s_add_u32 s29, s{60+2*pk}, 8000"); E("s_mov_b32 s50, 0x100000")
            E.label("L_spin"); E("s_memrealtime s[82:83]"); E("s_waitcnt lgkmcnt(0)"); E("s_sub_u32 s30, s82, s29"); E("s_cmp_ge_i32 s30, 0"); E("s_cbranch_scc1 L_end")
            E("s_sub_u32 s50, s50, 1"); E("s_cbranch_scc0 L_spin"); E("s_branch L_end")
        E("s_mov_b64 exec, -1"); E("v_mov_b32 v1, 0")
        for k in range(11): E(f"v_writelane_b32 v1, s{60+2*k}, {k}")
        E("v_writelane_b32 v1, s50, 11")
        E("s_lshl_b32 s29, s2, 3"); E("s_add_u32 s29, s29, s3"); E("s_lshl_b32 s29, s29, 6"); E(f"s_add_u32 s29, s29, {WS_DBG}")
        E("v_mbcnt_lo_u32_b32 v2, -1, 0"); E("v_lshlrev_b32 v2, 2, v2"); E("s_mov_b64 exec, 0xffff")
        E("buffer_store_dword v1, v2, s[16:19], s29 offen")
    E.label("L_end")
    E("s_endpgm")
    return E

HEAD=open(os.path.join(os.path.dirname(os.path.abspath(__file__)),"head.txt")).read()
def wrap(body):
    return HEAD+f"""; @launch grid=(256,1,1) block=(512,1,1) lds={LDS_SIZE}
.amdgcn_target "amdgcn-amd-amdhsa--gfx950"
.text
.globl {KN}
.p2align 12
.p2align 8
.type {KN},@function
{KN}:
"""+body+f"""
.section .rodata,"a"
.p2align 6
.amdhsa_kernel {KN}
  .amdhsa_next_free_vgpr 256
  .amdhsa_next_free_sgpr 96
  .amdhsa_accum_offset 256
  .amdhsa_group_segment_fixed_size 0
  .amdhsa_kernarg_size 96
  .amdhsa_user_sgpr_count 2
  .amdhsa_user_sgpr_kernarg_segment_ptr 1
  .amdhsa_system_sgpr_workgroup_id_x 1
.end_amdhsa_kernel
"""
ENTRY_OFF=0x300
def build_text(**kw):
    E=gen(**kw); warm=kw.get("warm",True)
    lines=E.out
    if not warm:
        return wrap("\n".join(l for l in lines if not l.startswith("@SAFE")))
    t="\n".join((f"SAFE{l[5:]}:" if l.startswith("@SAFE") else l) for l in lines)+"\nL_pad0:\n"
    tmp=f"gen_p1_{os.getpid()}.s"; open(tmp,"w").write(wrap(t))
    subprocess.run(["clang","-x","assembler","-target","amdgcn-amd-amdhsa","-mcpu=gfx950","-c",tmp,"-o",tmp+".o"],check=True)
    nm=subprocess.run(["llvm-readelf","-s",tmp+".o"],capture_output=True,text=True).stdout
    addr={}
    for ln in nm.splitlines():
        p=ln.split()
        if len(p)>=8 and p[7].startswith("SAFE"): addr[int(p[7][4:])]=int(p[1],16)
    chosen=[]; nxt=3072
    for k in sorted(addr):
        a=addr[k]+ENTRY_OFF+8*len(chosen)
        if a>=nxt:
            chosen.append(k); nxt=(a//1024+1)*1024
    out=[]
    for l in lines:
        if l.startswith("@SAFE"):
            k=int(l[5:])
            if k in chosen:
                i=chosen.index(k); tgt=f"L_pad{i+1}" if i+1<len(chosen) else "L_padret"
                out.append(f"L_pad{i}:"); out.append("    s_cmp_eq_u32 s51, 1"); out.append(f"    s_cbranch_scc1 {tgt}")
        else: out.append(l)
    return wrap("\n".join(out))
if __name__=="__main__":
    kw=eval("dict("+(sys.argv[2] if len(sys.argv)>2 else "")+")")
    open(sys.argv[1],"w").write(build_text(**kw))
```

```python
import sys, subprocess, re, os
sys.path.insert(0, os.path.dirname(os.path.abspath(__file__)))
from emit import Em
KN="parallel_sum__gqa_block_cached__geglu_ffn__decode_kernel"
DPP="row_mask:0xf bank_mask:0xf"
WS_EPOCH=0; WS_PR=0x1000; WS_LS=0x4000; WS_YX=0x8000; WS_QP=0x10000; WS_GP=0x30000; WS_OP=0x80000; WS_YP=0x100000; WS_DBG=0x180000; WS_SIZE=0x200000
L_FLAG=0; L_ML=64; L_Q=1024; L_XN=2048; L_O=4096; L_Y=12288; L_PR=16384; L_CT=256; LDS_SIZE=17408
SPIN=0x4000
LOG2E=0x3fb8aa3b

def spread(v,bits): return sum(((v>>k)&1)<<b for k,b in enumerate(bits))

def gen(pace=(5,), tail=None, qstep=43, trigA=28, trigB=100, trigC=170, dbg=False, warm=True, cu=2, probe=None,
        sbits=(15,17,18,21), tbits=(14,16,19,20,22), hwin=None, abl=(), ctrl=(5,7,1,4,2), cstop=480, csleep=0, outsc='', pre=('yx','op','yl'), d1=0, d2=0, d3=0, force=None, lpol='sc1', wearly=None, trigD=0, ppol='sc1'):
    E=Em()
    def stamp(k):
        if dbg: E(f"s_memrealtime s[{60+2*k}:{61+2*k}]")
    def finish():
        if dbg: E("s_branch L_dbg")
        else: E("s_endpgm")
        E.reset()
    def epoch_load(v):
        E(f"v_mov_b32 v{v}, 0"); E(f"buffer_load_dword v{v}, v{v}, s[16:19], 0 offen offset:{WS_EPOCH} sc1")
    def tag_from(v):
        E(f"v_readfirstlane_b32 s36, v{v}"); E("s_add_u32 s36, s36, 0x01010101")
    def tag_bits(bits):
        for k in range(4): E(f"s_bfe_u32 s{37+k}, s36, {hex((bits<<16)|(8*k))}")
    def tag_insert(r, vmask):
        for k in range(4): E(f"v_and_or_b32 v{r+k}, v{r+k}, v{vmask}, s{37+k}")
    def check(units, t, bits):
        for n,a in enumerate(units):
            for k in range(4): E(f"v_xor_b32 v{a+k}, s{37+k}, v{a+k}")
            if n==0: E(f"v_or_b32 v{t}, v{a}, v{a+1}")
            else: E(f"v_or3_b32 v{t}, v{a}, v{a+1}, v{t}")
            E(f"v_or3_b32 v{t}, v{a+2}, v{a+3}, v{t}")
        E(f"v_and_b32 v{t}, {hex((1<<bits)-1)}, v{t}")
        E(f"v_cmp_ne_u32 vcc, 0, v{t}")
    pollid=[0]
    def poll(loads, chk, masked, sleep=0):
        k=pollid[0]; pollid[0]+=1
        if not masked and "nog" in abl: return
        if not masked and "once" in abl:
            for l in loads: E(l)
            E("s_waitcnt vmcnt(0)"); E.vm=[]; return
        E(f"s_mov_b32 s50, {SPIN}")
        E.label(f"L_poll{k}")
        for l in loads: E(l)
        E("s_waitcnt vmcnt(0)"); E.vm=[]
        chk()
        E(f"s_cbranch_vccz L_pollx{k}")
        if masked=="quad": E("s_wqm_b64 exec, vcc")
        elif masked=="col":
            E("s_or_b32 s29, vcc_lo, vcc_hi"); E("s_lshr_b32 s35, s29, 16"); E("s_or_b32 s29, s29, s35"); E("s_and_b32 s29, s29, 0xffff")
            E("s_mul_i32 exec_lo, s29, 0x10001"); E("s_mov_b32 exec_hi, exec_lo")
        if sleep: E(f"s_sleep {sleep}")
        E("s_sub_u32 s50, s50, 1"); E(f"s_cbranch_scc0 L_poll{k}")
        E.label(f"L_pollx{k}")
        if masked in ("quad","col"): E("s_mov_b64 exec, -1")
    def poll_pipe(mk, m, sleep, masked):
        k=pollid[0]; pollid[0]+=1
        n=len(mk(0)[0])
        E(f"s_mov_b32 s50, {SPIN}")
        for j in range(m-1):
            for l in mk(j)[0]: E(l)
            if sleep: E(f"s_sleep {sleep+1}")
        E.label(f"L_poll{k}")
        for j in range(m):
            for l in mk((j+m-1)%m)[0]: E(l)
            E(f"s_waitcnt vmcnt({n*(m-1)})")
            mk(j)[1]()
            E(f"s_cbranch_vccz L_pollx{k}")
            if masked=="quad": E("s_wqm_b64 exec, vcc")
            else:
                E("s_or_b32 s29, vcc_lo, vcc_hi"); E("s_lshr_b32 s35, s29, 16"); E("s_or_b32 s29, s29, s35"); E("s_and_b32 s29, s29, 0xffff")
                E("s_mul_i32 exec_lo, s29, 0x10001"); E("s_mov_b32 exec_hi, exec_lo")
            if sleep: E(f"s_sleep {sleep}")
        E("s_sub_u32 s50, s50, 1"); E(f"s_cbranch_scc0 L_poll{k}")
        E.label(f"L_pollx{k}"); E.vm=[]
        E("s_mov_b64 exec, -1")
    def lds_wait(thr, t, name, sleep):
        E(f"s_mov_b32 s50, {SPIN*4}"); E(f"v_mov_b32 v{t}, 0")
        E.label(name)
        E(f"ds_read_b32 v{t+1}, v{t} offset:{L_PR}"); E("s_waitcnt lgkmcnt(0)")
        E(f"v_cmp_le_u32 vcc, {thr}, v{t+1}"); E(f"s_cbranch_vccnz {name}x")
        E(f"s_sleep {sleep}"); E("s_sub_u32 s50, s50, 1"); E(f"s_cbranch_scc0 {name}")
        E.label(name+"x")
    def selectors(sel, t):
        E(f"v_and_b32 v{t}, 1, v0"); E(f"v_cmp_eq_u32 vcc, 1, v{t}")
        E(f"v_mov_b32 v{t+1}, 0x0c0c0100"); E(f"v_mov_b32 v{t+2}, 0x01000c0c"); E(f"v_cndmask_b32 v{t+1}, v{t+1}, v{t+2}, vcc")
        E(f"v_mov_b32 v{t+2}, 0x0c0c0302"); E(f"v_mov_b32 v{t+3}, 0x03020c0c"); E(f"v_cndmask_b32 v{t+2}, v{t+2}, v{t+3}, vcc")
        E(f"v_bfe_u32 v{t}, v0, 3, 1"); E(f"v_bfe_u32 v{t+3}, v0, 1, 1"); E(f"v_lshl_add_u32 v{t}, v{t}, 1, v{t+3}")
        E(f"v_mov_b32 v{t+3}, 0x0c0c0c0c")
        for k in range(4):
            E(f"v_cmp_eq_u32 vcc, {k}, v{t}")
            E(f"v_cndmask_b32 v{sel+2*k}, v{t+3}, v{t+1}, vcc"); E(f"v_cndmask_b32 v{sel+2*k+1}, v{t+3}, v{t+2}, vcc")
    def buildA(dst, pk, par, sel):
        for k in range(4): E(f"v_perm_b32 v{dst+k}, v{pk}, v{pk}, v{sel+2*k+par}")
    def rbf(d, s):
        E(f"v_cvt_pk_bf16_f32 v{d}, v{s}, v{s}"); E(f"v_and_b32 v{d}, 0xffff0000, v{d}")
    def srd(base, size):
        E(f"s_mov_b32 s{base+2}, {hex(size)}"); E(f"s_mov_b32 s{base+3}, 0x20000")
    def kappa():
        E("s_bfe_u32 s41, s2, 0x20003"); E("s_and_b32 s42, s2, 7"); E("s_lshl_b32 s42, s42, 3"); E("s_lshr_b32 s29, s2, 5"); E("s_or_b32 s42, s42, s29")
    def pres_load(v, tag=None):
        E(f"v_and_b32 v{v}, 7, v0"); E(f"v_lshlrev_b32 v{v}, 2, v{v}"); E(f"buffer_load_dword v{v}, v{v}, s[84:87], s88 offen sc1", tag)
    def pres_eval(v):
        E("s_mul_i32 s47, s89, 0x01010101"); E(f"v_cmp_ne_u32 vcc, s47, v{v}"); E("s_cmp_eq_u64 vcc, 0"); E("s_cselect_b32 s47, 1, 0")
        if force is not None: E(f"s_mov_b32 s47, {force}")
    stid=[0]
    def store_sel(text):
        k=stid[0]; stid[0]+=1
        E("s_cmp_eq_u32 s47, 1"); E(f"s_cbranch_scc1 L_st{k}")
        h=list(E.hist); E(text+" sc1"); E(f"s_branch L_stx{k}")
        E.label(f"L_st{k}"); E.hist=h; E.vm.pop(); E(text); E.label(f"L_stx{k}")

    E("s_load_dwordx2 s[8:9], s[0:1], 8")
    E("s_load_dwordx2 s[16:17], s[0:1], 88")
    stamp(0)
    E("v_lshrrev_b32 v3, 6, v0")
    E("s_cmp_ge_u32 s2, 256"); E("s_cbranch_scc1 L_end0")
    E("v_readfirstlane_b32 s3, v3")
    E("v_and_b32 v0, 63, v0")
    E("s_mov_b32 s51, 0")
    srd(16, WS_SIZE)
    E("s_and_b32 s6, s2, 15"); E("s_lshr_b32 s7, s2, 4")
    E("s_cmp_ge_u32 s3, 4"); E("s_cbranch_scc1 L_helper")

    vK,vV,vM0,vM1,vMX,vL,vQ=1,2,4,5,6,7,8
    D=[12,16,20,24]; T=[28,29,30,31]; X=[32,34]; ACC=36; S=44; vPA,vCA,vCT,vTM=76,77,78,79; RING0=80; NSLOT=44
    SEL=216; PA=226; OA=227; MH=230; WA=231; U0=232; U1=236; O=240; PK=244; CT=246
    E("s_lshl_b32 s26, s6, 23"); E("s_lshl_b32 s29, s3, 12"); E("s_or_b32 s26, s26, s29")
    k=0
    while k<4:
        n=1
        while k+n<4 and sbits[k+n]==sbits[k]+n: n+=1
        E(f"s_bfe_u32 s29, s7, {hex((n<<16)|k)}"); E(f"s_lshl_b32 s29, s29, {sbits[k]}"); E("s_or_b32 s26, s26, s29"); k+=n
    E("s_mov_b32 s28, s26")
    E("v_and_b32 v1, 3, v0"); E("v_lshlrev_b32 v1, 4, v1"); E("v_lshrrev_b32 v3, 4, v0"); E("v_lshl_add_u32 v1, v3, 6, v1")
    E("v_bfe_u32 v3, v0, 2, 2"); E("v_lshl_add_u32 v1, v3, 8, v1")
    srd(8, 0x8000000)
    E("s_waitcnt lgkmcnt(0)")
    seq=[('K',n) for n in range(128)]+[('V',n) for n in range(128)]+[('W',n) for n in range(4)]
    if wearly is not None:
        seq=seq[:256]
        for n in range(4): seq.insert(wearly[0]+n*wearly[1],('W',n))
    free=list(range(NSLOT)); slot={}
    reserve=[False]
    RES=set(range((SEL-RING0)//4, NSLOT))
    def release(tag): free.append(slot[tag])
    def issue(tag):
        cand=[s for s in free if not (reserve[0] and s in RES)]
        assert cand, ("ring exhausted",tag)
        s=cand[0]; free.remove(s); slot[tag]=s; r=RING0+4*s
        kind,n=tag
        if kind=='K': E(f"buffer_load_dwordx4 v[{r}:{r+3}], v{vK}, s[8:11], s28 offen offset:{(n&3)*1024} nt",tag)
        elif kind=='V': E(f"buffer_load_dwordx4 v[{r}:{r+3}], v{vV}, s[12:15], s28 offen offset:{(n&3)*1024} nt",tag)
        else:
            E(f"buffer_load_dwordx4 v[{r}:{r+3}], v{WA}, s[20:23], s30 offen nt",tag)
            if n<3: E("s_add_u32 s30, s30, 4096")
        if kind in 'KV' and (n&3)==3 and tag!=('V',127):
            E(f"s_or_b32 s28, s26, {hex(spread(((n>>2)+1)&31,tbits))}")
    N0=pace[0]
    for i in range(N0): issue(seq[i])
    E("s_load_dwordx2 s[12:13], s[0:1], 16"); E("s_load_dwordx2 s[20:21], s[0:1], 32")
    E("s_setprio 2")
    E("s_barrier")
    E("s_branch L_stream")
    svm=list(E.vm); E.reset()
    E.label("L_end0"); E("s_endpgm"); E.reset()

    E.label("L_helper")
    E("v_mov_b32 v4, 0"); E("v_lshlrev_b32 v2, 2, v0"); E(f"ds_write_b32 v2, v4 offset:0")
    E(f"v_mov_b32 v5, {ctrl[2] if ctrl else 0}"); E(f"ds_write_b32 v2, v5 offset:{L_CT}"); E("v_lshlrev_b32 v5, 4, v0"); E(f"ds_write_b32 v5, v4 offset:{L_PR}")
    E("s_load_dwordx2 s[24:25], s[0:1], 0"); E("s_load_dwordx2 s[4:5], s[0:1], 24"); E("s_load_dwordx4 s[52:55], s[0:1], 48"); E("s_load_dwordx4 s[56:59], s[0:1], 64")
    E("s_load_dwordx2 s[84:85], s[0:1], 80")
    srd(24,2048); E("s_mov_b32 s23, 0x20000"); srd(84,256)
    E("s_getreg_b32 s89, hwreg(HW_REG_XCC_ID)"); E("s_and_b32 s89, s89, 7"); E("s_add_u32 s89, s89, 1"); E("s_and_b32 s88, s2, 7"); E("s_lshl_b32 s88, s88, 5")
    E("s_cmp_eq_u32 s3, 4"); E("s_cbranch_scc1 L_h0")
    E("s_waitcnt lgkmcnt(0)"); E("s_barrier")
    E("s_cmp_eq_u32 s3, 7"); E("s_cbranch_scc1 L_h3")
    E("s_cmp_eq_u32 s3, 5"); E("s_cbranch_scc1 L_h1")
    E("s_lshr_b32 s29, s2, 3"); E("v_mov_b32 v4, s29"); E("v_mov_b32 v5, s89")
    E("s_mov_b64 exec, 1"); E("buffer_store_byte v5, v4, s[84:87], s88 offen"); E("s_mov_b64 exec, -1")
    E("s_branch L_h2"); E.reset()
    E.label("L_h0")
    E("s_and_b32 s29, s2, 7"); E("s_lshr_b32 s30, s2, 6"); E("s_bfe_u32 s31, s2, 0x20004")
    E("s_lshl_b32 s32, s29, 2"); E("s_add_u32 s32, s32, s30")
    E("s_lshl_b32 s35, s29, 1"); E("s_and_b32 s30, s30, 1"); E("s_or_b32 s30, s30, s35")
    E("s_lshr_b32 s35, s2, 7"); E("s_lshl_b32 s35, s35, 10")
    E("s_lshl_b32 s34, s30, 13"); E("s_add_u32 s34, s34, s35"); E("s_lshl_b32 s35, s31, 7"); E("s_add_u32 s34, s34, s35"); E(f"s_add_u32 s34, s34, {WS_GP}")
    E("s_lshl_b32 s33, s32, 11"); E("s_lshl_b32 s35, s31, 9"); E("s_add_u32 s33, s33, s35"); E(f"s_add_u32 s33, s33, {WS_QP}")
    E("v_lshlrev_b32 v2, 4, v0"); E("v_lshrrev_b32 v3, 4, v0"); E("v_and_b32 v1, 15, v0"); E("v_lshlrev_b32 v1, 4, v1")
    E("s_bitcmp1_b32 s2, 3")
    E("s_cselect_b32 s34, s34, s33"); E("s_cselect_b32 s32, s30, s32"); E("s_cselect_b32 s33, 3584, 0"); E("s_cselect_b32 s43, s29, 0")
    E(f"s_cselect_b32 s22, {512*3584}, 0"); E("s_cselect_b32 s44, 11, 6"); E("s_cselect_b32 s45, 9, 16"); E("s_cselect_b32 s46, 6, 8")
    E("s_bitcmp0_b32 s2, 3"); E("s_cselect_b32 s33, 8192, s33"); E("s_cselect_b32 s22, 0x400000, s22")
    E("s_lshl_b32 s28, s32, 8"); E("s_lshl_b32 s30, s33, 7"); E("s_mul_i32 s30, s30, s31"); E("s_add_u32 s28, s28, s30")
    E("s_lshl_b32 s30, s33, 5"); E("v_mad_u32_u24 v1, v3, s30, v1")
    E("s_waitcnt lgkmcnt(0)")
    E("buffer_load_dwordx4 v[4:7], v2, s[24:27], 0 offen"); E("buffer_load_dwordx4 v[8:11], v2, s[24:27], 0 offen offset:1024")
    epoch_load(78)
    E("s_barrier")
    E("s_bitcmp1_b32 s2, 7"); E("s_cselect_b32 s20, s54, s52"); E("s_cselect_b32 s21, s55, s53")
    E("s_bitcmp0_b32 s2, 3"); E("s_cselect_b32 s20, s4, s20"); E("s_cselect_b32 s21, s5, s21")
    E("s_cmp_eq_u32 s43, 7"); E("s_cbranch_scc1 L_h0skip")
    if "now" in abl: E("s_mov_b32 s22, 0")
    nfirst = 32 if hwin is None else hwin
    def wload(j): E(f"buffer_load_dwordx4 v[{128+4*j}:{131+4*j}], v1, s[20:23], s28 offen nt",('w',j)); E("s_add_u32 s28, s28, s33")
    for j in range(nfirst): wload(j)
    E("v_and_b32 v76, 3, v0"); E("v_lshlrev_b32 v76, 4, v76"); E("v_bfe_u32 v28, v0, 2, 2"); E("v_lshl_add_u32 v76, v28, s44, v76")
    E("v_bfe_u32 v28, v0, 4, 1"); E("v_lshl_add_u32 v76, v28, s45, v76"); E("v_lshrrev_b32 v28, 5, v0"); E("v_lshl_add_u32 v76, v28, s46, v76")
    selectors(40,28)
    E.safe()
    E.wait_n(nfirst)
    stamp(1)
    for b in range(2):
        for k in range(4):
            E(f"v_lshlrev_b32 v{12+8*b+2*k}, 16, v{4+4*b+k}"); E(f"v_and_b32 v{13+8*b+2*k}, 0xffff0000, v{4+4*b+k}")
    def red2(a,c,t):
        E(f"v_permlane32_swap_b32 v{a}, v{c}"); E(f"v_add_f32 v{a}, v{a}, v{c}")
        E(f"v_mov_b32 v{t}, v{a}"); E(f"v_permlane16_swap_b32 v{t}, v{a}"); E(f"v_add_f32 v{a}, v{a}, v{t}")
        for m in (1,2,4,8): E(f"v_add_f32_dpp v{a}, v{a}, v{a} row_ror:{m} {DPP}")
        E(f"v_mul_f32 v{a}, 0x3b000000, v{a}")
    for b in range(2): E(f"v_add_f32 v{28+b}, v{12+8*b}, v{13+8*b}")
    for k in range(2,8):
        for b in range(2): E(f"v_add_f32 v{28+b}, v{28+b}, v{12+8*b+k}")
    red2(28,29,30)
    E("v_readlane_b32 s52, v28, 0"); E("v_readlane_b32 s53, v28, 32")
    rbf(31,28)
    E.safe()
    for k in range(8):
        for b in range(2):
            E(f"v_subrev_f32 v{32+b}, s{52+b}, v{12+8*b+k}")
            if k==0: E(f"v_mul_f32 v{34+b}, v{32+b}, v{32+b}")
            else: E(f"v_fmac_f32 v{34+b}, v{32+b}, v{32+b}")
    red2(34,35,30)
    rbf(34,34); E("v_add_f32 v34, 0x3727c5ac, v34"); rbf(34,34); E("v_sqrt_f32 v34, v34"); rbf(34,34); E("v_rcp_f32 v34, v34")
    E("v_readlane_b32 s54, v31, 0"); E("v_readlane_b32 s55, v31, 32"); E("v_readlane_b32 s56, v34, 0"); E("v_readlane_b32 s57, v34, 32")
    E.safe()
    for b in range(2):
        for k in range(8): E(f"v_subrev_f32 v{12+8*b+k}, s{54+b}, v{12+8*b+k}")
        for k in range(4): E(f"v_cvt_pk_bf16_f32 v{4+4*b+k}, v{12+8*b+2*k}, v{13+8*b+2*k}")
        for k in range(4):
            E(f"v_lshlrev_b32 v{12+8*b+2*k}, 16, v{4+4*b+k}"); E(f"v_and_b32 v{13+8*b+2*k}, 0xffff0000, v{4+4*b+k}")
        for k in range(8): E(f"v_mul_f32 v{12+8*b+k}, s{56+b}, v{12+8*b+k}")
        for k in range(4): E(f"v_cvt_pk_bf16_f32 v{4+4*b+k}, v{12+8*b+2*k}, v{13+8*b+2*k}")
        E(f"ds_write_b128 v2, v[{4+4*b}:{7+4*b}] offset:{L_XN+1024*b}")
        E.safe()
    E("v_bfe_u32 v28, v0, 2, 1"); E("v_lshlrev_b32 v28, 10, v28"); E("v_lshrrev_b32 v29, 4, v0"); E("v_lshl_add_u32 v28, v29, 6, v28")
    E("s_lshl_b32 s30, s31, 8"); E("v_add_u32 v28, s30, v28")
    for k in range(4): E(f"ds_read_b128 v[{48+4*k}:{51+4*k}], v28 offset:{L_XN+16*k}")
    E("v_mov_b32 v77, 0xfffffff0")
    tag_from(78); tag_bits(4)
    if hwin is None: pres_load(79,'ps')
    E("s_waitcnt lgkmcnt(0)")
    stamp(2)
    for j in range(32):
        a=64+4*(j&1)
        buildA(a, 48+(j>>1), j&1, 40)
        E.wait_tag(('w',j))
        if j+nfirst<32: wload(j+nfirst)
        if j+nfirst==31: pres_load(79,'ps')
        E(f"v_mfma_f32_16x16x32_bf16 v[72:75], v[{a}:{a+3}], v[{128+4*j}:{131+4*j}], "+("0" if j==0 else "v[72:75]"))
        E.safe()
    tag_insert(72,77)
    E.wait_tag('ps'); pres_eval(79)
    if dbg: E("s_mov_b32 s74, s47")
    if "nost" not in abl: store_sel("buffer_store_dwordx4 v[72:75], v76, s[16:19], s34 offen")
    stamp(3)
    E("s_branch L_red"); E.reset()
    E.label("L_h0skip")
    E("s_waitcnt vmcnt(0)"); tag_from(78)
    E("s_branch L_red"); E.reset()
    E.safe()
    E.label("L_h1")
    epoch_load(44)
    E("s_lshl_b32 s28, s6, 13"); E(f"s_add_u32 s28, s28, {WS_QP}")
    E("v_and_b32 v3, 3, v0"); E("v_lshlrev_b32 v3, 4, v3")
    E("v_lshrrev_b32 v2, 4, v0"); E("v_lshl_add_u32 v2, v2, 6, v3"); E("v_bfe_u32 v3, v0, 2, 2"); E("v_lshl_add_u32 v2, v3, 11, v2")
    E("s_waitcnt vmcnt(0)"); tag_from(44); tag_bits(4)
    lds_wait(trigA//2, 4, "L_trA", 2)
    stamp(1)
    E.safe()
    poll([f"buffer_load_dwordx4 v[{8+4*k}:{11+4*k}], v2, s[16:19], s28 offen offset:{k*256} sc1" for k in range(8)],
         lambda: check([8+4*k for k in range(8)],4,4), False, sleep=8)
    if dbg: E("s_mov_b32 s76, s50")
    E.safe()
    for rho in range(1,4):
        for c in range(8): E(f"v_add_f32 v{8+c}, v{8+c}, v{8+8*rho+c}")
    for c in range(4): E(f"v_cvt_pk_bf16_f32 v{40+c}, v{8+2*c}, v{9+2*c}")
    E("v_lshlrev_b32 v3, 4, v0"); E(f"ds_write_b128 v3, v[40:43] offset:{L_Q}")
    E("v_mov_b32 v4, 0"); E("v_mov_b32 v6, 1"); E("v_mov_b32 v7, s36"); E("s_waitcnt lgkmcnt(0)"); E(f"ds_write_b64 v4, v[6:7] offset:{L_FLAG}")
    stamp(2)
    E.label("L_red"); E.reset()
    E("s_sub_u32 s29, s3, 4"); E("s_lshl_b32 s30, s29, 1")
    E("v_lshrrev_b32 v1, 5, v0"); E("v_add_u32 v1, s30, v1")
    E("v_lshlrev_b32 v2, 3, v1")
    E(f"s_mov_b32 s50, {SPIN*4}")
    E.label("L_mlw")
    for s_ in range(4): E(f"ds_read_b64 v[{8+2*s_}:{9+2*s_}], v2 offset:{L_ML+32*s_}")
    E("s_waitcnt lgkmcnt(0)")
    E("v_min_u32 v4, v9, v11"); E("v_min3_u32 v4, v4, v13, v15"); E("v_cmp_eq_u32 vcc, 0, v4")
    E("s_cbranch_vccz L_mlx")
    E("s_sleep 16"); E("s_sub_u32 s50, s50, 1"); E("s_cbranch_scc0 L_mlw")
    E.label("L_mlx")
    E.safe()
    stamp(4)
    pres_load(52)
    E("v_max_f32 v16, v8, v10"); E("v_max3_f32 v16, v16, v12, v14")
    for s_ in range(4): E(f"v_sub_f32 v{20+s_}, v{8+2*s_}, v16")
    for s_ in range(4): E(f"v_mul_f32 v{20+s_}, {hex(LOG2E)}, v{20+s_}")
    for s_ in range(4): E(f"v_exp_f32 v{20+s_}, v{20+s_}")
    E("v_mul_f32 v17, v20, v9")
    for s_ in range(1,4): E(f"v_fmac_f32 v17, v{20+s_}, v{9+2*s_}")
    E("v_mov_b32 v18, s36"); E("v_not_b32 v19, s36")
    E("s_lshl_b32 s33, s6, 10"); E(f"s_add_u32 s33, s33, {WS_LS}"); E("s_lshl_b32 s35, s7, 4"); E("s_add_u32 s32, s33, s35")
    E("v_lshlrev_b32 v3, 8, v1"); E("v_and_b32 v6, 15, v0"); E("v_lshl_add_u32 v6, v6, 4, v3")
    E("s_lshl_b32 s34, s6, 4"); E("s_add_u32 s34, s34, s7"); E("s_lshl_b32 s34, s34, 11"); E(f"s_add_u32 s34, s34, {WS_OP}")
    E("v_lshlrev_b32 v26, 4, v0"); E("s_lshl_b32 s35, s29, 10"); E("v_add_u32 v26, s35, v26")
    E("s_waitcnt vmcnt(0)"); E.vm=[]; pres_eval(52)
    E("v_mov_b32 v4, 0"); E("v_mov_b32 v5, s47"); E(f"ds_write_b32 v4, v5 offset:{L_FLAG+16}")
    E("s_mov_b32 exec_lo, 1"); E("s_mov_b32 exec_hi, 1")
    store_sel("buffer_store_dwordx4 v[16:19], v3, s[16:19], s32 offen")
    E("s_mov_b64 exec, -1")
    E.safe()
    lds_wait(trigC//2, 4, "L_trE", 16)
    def chkl():
        E("v_xor_b32 v10, s36, v10"); E("v_xnor_b32 v11, s36, v11"); E("v_or_b32 v10, v10, v11"); E("v_cmp_ne_u32 vcc, 0, v10")
    poll(["buffer_load_dwordx4 v[8:11], v6, s[16:19], s33 offen sc1"], chkl, "all", sleep=16)
    E("v_mov_b32 v12, v8")
    for m in (1,2,4,8): E(f"v_max_f32_dpp v12, v12, v12 row_ror:{m} {DPP}")
    E("v_sub_f32 v8, v8, v12"); E("v_sub_f32 v16, v16, v12"); E(f"v_mul_f32 v8, {hex(LOG2E)}, v8"); E(f"v_mul_f32 v16, {hex(LOG2E)}, v16")
    E("v_exp_f32 v8, v8"); E("v_exp_f32 v16, v16"); E("v_mul_f32 v8, v8, v9")
    for m in (1,2,4,8): E(f"v_add_f32_dpp v8, v8, v8 row_ror:{m} {DPP}")
    E("v_rcp_f32 v8, v8"); E("v_mul_f32 v16, v16, v8")
    for s_ in range(4): E(f"v_mul_f32 v{20+s_}, v{20+s_}, v16")
    tag_bits(8); E("v_mov_b32 v24, 0xffffff00")
    E.safe()
    if "op" in pre:
        if trigD: lds_wait(trigD//2, 4, "L_trD", 16)
        E("buffer_load_dwordx4 v[52:55], v26, s[16:19], s34 offen "+ppol)
        if "yl" in pre:
            kappa(); E("s_lshl_b32 s32, s41, 16"); E("s_lshl_b32 s35, s42, 10"); E("s_add_u32 s32, s32, s35"); E(f"s_add_u32 s32, s32, {WS_YP}")
            E("v_lshrrev_b32 v56, 1, v26"); E("buffer_load_dwordx2 v[56:57], v56, s[16:19], s32 offen "+ppol)
        E("s_waitcnt vmcnt(0)"); E.vm=[]
    E("s_waitcnt lgkmcnt(0)")
    stamp(5)
    E.safe()
    E("s_setprio 3")
    E("s_barrier")
    for s_ in range(4): E(f"ds_read_b128 v[{32+4*s_}:{35+4*s_}], v26 offset:{L_O+2048*s_}")
    for s_ in range(4):
        E(f"s_waitcnt lgkmcnt({3-s_})")
        for c in range(4): E((f"v_mul_f32 v{28+c}, v20, v{32+c}") if s_==0 else f"v_fmac_f32 v{28+c}, v{20+s_}, v{32+4*s_+c}")
    tag_insert(28,24)
    if "notail" not in abl: store_sel("buffer_store_dwordx4 v[28:31], v26, s[16:19], s34 offen")
    stamp(6)
    finish()
    E.safe()
    E.label("L_h3")
    E("s_mov_b32 s20, s58"); E("s_mov_b32 s21, s59"); E("s_mov_b32 s22, 2048")
    if warm:
        if warm!="walk":
            E("s_getpc_b64 s[4:5]"); E.label("L_pc")
            E(f"s_sub_u32 s4, s4, L_pc-{KN}"); E("s_subb_u32 s5, s5, 0")
            E("s_bfe_u32 s29, s2, 0x40003"); E("s_lshl_b32 s29, s29, 11"); E("v_lshlrev_b32 v1, 7, v0"); E("v_add_u32 v1, s29, v1")
            E(f"v_min_u32 v1, L_end-{KN}, v1")
            E("s_mov_b64 exec, 0xffff"); E("global_load_dword v2, v1, s[4:5]"); E("s_mov_b64 exec, -1")
            E("s_waitcnt vmcnt(0)"); E.vm=[]
        E("s_mov_b32 s51, 1"); E("s_branch L_pad0")
        E.label("L_padret"); E("s_mov_b32 s51, 0")
    stamp(1)
    epoch_load(50)
    if ctrl:
        lo,hi,d0,off,sh=ctrl
        E("v_and_b32 v1, 3, v0"); E("v_lshlrev_b32 v2, 2, v1"); E("v_lshlrev_b32 v1, 8, v1")
        E("v_and_b32 v3, 31, v0"); E("v_lshlrev_b32 v3, 2, v3")
        E("s_lshl_b32 s28, s89, 8"); E(f"s_add_u32 s28, s28, {WS_PR}")
        E("s_lshr_b32 s29, s2, 3"); E("s_lshl_b32 s29, s29, 2"); E("v_mov_b32 v8, s29")
    E("s_waitcnt vmcnt(0)"); E.vm=[]
    tag_from(50)
    if ctrl:
        E("s_and_b32 s33, s36, 0xfffffc00"); E(f"s_mov_b32 s50, {SPIN}")
        E.label("L_cl")
        E(f"ds_read_b32 v10, v1 offset:{L_PR}"); E("s_waitcnt lgkmcnt(0)")
        E(f"v_add_u32_dpp v11, v10, v10 quad_perm:[1,0,3,2] {DPP}"); E(f"v_add_u32_dpp v11, v11, v11 quad_perm:[2,3,0,1] {DPP}")
        E("v_or_b32 v12, s33, v11"); E("v_readfirstlane_b32 s31, v11")
        E("s_mov_b64 exec, 1"); E("buffer_store_dword v12, v8, s[16:19], s28 offen"); E("s_mov_b64 exec, -1")
        E(f"s_cmp_ge_u32 s31, {cstop}"); E("s_cbranch_scc1 L_cx")
        E("buffer_load_dword v13, v3, s[16:19], s28 offen sc1")
        E("s_waitcnt vmcnt(0)"); E.vm=[]
        E("v_xor_b32 v13, s33, v13"); E("v_cmp_gt_u32 vcc, 0x400, v13"); E("v_cndmask_b32 v13, v11, v13, vcc")
        for m in (1,2,4,8): E(f"v_add_u32_dpp v13, v13, v13 row_ror:{m} {DPP}")
        E("v_mov_b32 v14, v13"); E("v_permlane16_swap_b32 v14, v13"); E("v_add_u32 v13, v13, v14")
        E("v_lshlrev_b32 v14, 7, v10"); E("v_sub_u32 v13, v13, v14")
        E(f"v_add_u32 v13, {off*32 + (d0<<(5+sh)) + (1<<(4+sh))}, v13"); E(f"v_ashrrev_i32 v13, {5+sh}, v13")
        E(f"ds_write_b32 v2, v13 offset:{L_CT}")
        if csleep: E(f"s_sleep {csleep}")
        E("s_sub_u32 s50, s50, 1"); E("s_cbranch_scc0 L_cl")
        E.label("L_cx")
        E.safe()
    kappa()
    if not ctrl: lds_wait(cstop//4, 4, "L_trC", 16)
    E("s_and_b32 s30, s42, 7"); E("s_and_b32 s43, s2, 7")
    E("v_and_b32 v6, 3, v0"); E("v_lshrrev_b32 v4, 5, v0"); E("v_lshl_add_u32 v6, v4, 2, v6"); E("v_lshlrev_b32 v6, 4, v6")
    E("v_bfe_u32 v3, v0, 2, 3"); E("v_lshl_add_u32 v1, v3, 10, v6"); E("v_lshlrev_b32 v5, 4, v0")
    E("v_and_b32 v2, 7, v0"); E("v_lshlrev_b32 v2, 4, v2"); E("v_lshrrev_b32 v3, 4, v0"); E("v_lshl_add_u32 v2, v3, 1, v2")
    E("s_lshl_b32 s44, s41, 16"); E("s_lshl_b32 s31, s43, 13"); E("s_add_u32 s44, s44, s31"); E(f"s_add_u32 s44, s44, {WS_YP}")
    E("s_lshl_b32 s31, s30, 10"); E("s_add_u32 s48, s44, s31")
    E("s_lshl_b32 s31, s30, 7"); E("s_add_u32 s44, s44, s31")
    E("s_lshl_b32 s45, s41, 3"); E("s_add_u32 s45, s45, s30"); E("s_lshl_b32 s45, s45, 10"); E(f"s_add_u32 s45, s45, {WS_YX}")
    E("s_lshl_b32 s46, s43, 7"); E("s_add_u32 s46, s46, s45")
    E("s_bfe_u32 s32, s30, 0x10001"); E("s_lshl_b32 s32, s32, 10"); E("s_lshl_b32 s33, s41, 8"); E("s_add_u32 s32, s32, s33")
    E("s_and_b32 s33, s30, 1"); E("s_lshl_b32 s33, s33, 7"); E("s_add_u32 s32, s32, s33"); E("s_lshr_b32 s33, s30, 2"); E("s_lshl_b32 s33, s33, 3"); E("s_add_u32 s32, s32, s33")
    tag_bits(8)
    E("v_mov_b32 v32, s36"); E("v_mov_b32 v34, 0"); E("v_mov_b32 v35, 0xffffff00")
    E("s_cmp_lg_u32 s30, s43"); E("s_cbranch_scc1 L_nown")
    E("buffer_load_ushort v30, v2, s[24:27], s32 offen")
    if "yx" in pre: E("buffer_load_dwordx4 v[12:15], v5, s[16:19], s45 offen sc1")
    E.label("L_nown")
    E("s_waitcnt vmcnt(0)"); E.vm=[]
    stamp(2)
    E.safe()
    E("s_setprio 3")
    E("s_barrier"); E("s_barrier")
    if "notail" in abl or "nopolls" in abl: E("s_branch L_fin")
    if d2: E(f"s_sleep {d2}")
    stamp(3)
    poll(["buffer_load_dwordx4 v[8:11], v1, s[16:19], s44 offen "+lpol], lambda: check([8],4,8), "all")
    if dbg: E("s_mov_b32 s76, s50")
    stamp(6)
    for m in ("row_ror:4","row_ror:8"):
        for c in range(4): E(f"v_add_f32_dpp v{8+c}, v{8+c}, v{8+c} {m} {DPP}")
    for c in range(4): E(f"v_mov_b32 v{16+c}, v{8+c}")
    for c in range(4): E(f"v_permlane16_swap_b32 v{16+c}, v{8+c}")
    for c in range(4): E(f"v_add_f32 v{8+c}, v{8+c}, v{16+c}")
    tag_insert(8,35)
    E("s_mov_b32 exec_lo, 15"); E("s_mov_b32 exec_hi, 15")
    E("buffer_store_dwordx4 v[8:11], v6, s[16:19], s46 offen sc1")
    E("s_mov_b64 exec, -1")
    stamp(7)
    E("s_cmp_lg_u32 s30, s43"); E("s_cbranch_scc1 L_fin")
    E("v_lshlrev_b32 v30, 16, v30")
    if d3: E(f"s_sleep {d3}")
    poll(["buffer_load_dwordx4 v[12:15], v5, s[16:19], s45 offen sc1"], lambda: check([12],4,8), "all")
    stamp(4)
    E("v_permlane32_swap_b32 v12, v14"); E("v_permlane32_swap_b32 v13, v15")
    E("v_add_f32 v12, v12, v14"); E("v_add_f32 v13, v13, v15")
    E("v_permlane16_swap_b32 v12, v13"); E("v_add_f32 v12, v12, v13")
    E(f"v_add_f32_dpp v12, v12, v12 row_ror:8 {DPP}")
    E("v_add_f32 v12, v12, v30"); E("v_cvt_pk_bf16_f32 v12, v12, v12")
    E("s_mov_b32 exec_lo, 0x00ff00ff"); E("s_mov_b32 exec_hi, 0x00ff00ff")
    E("buffer_store_short v12, v2, s[20:23], s32 offen "+outsc)
    E("s_cmp_lg_u32 s2, 0"); E("s_cbranch_scc1 L_fin2")
    E("s_mov_b64 exec, 1")
    E(f"buffer_store_dword v32, v34, s[16:19], 0 offen offset:{WS_EPOCH} sc1")
    E.label("L_fin2")
    stamp(5)
    E.label("L_fin")
    finish()
    E.safe()
    E.label("L_h2")
    E("s_mov_b32 s20, s56"); E("s_mov_b32 s21, s57"); E(f"s_mov_b32 s22, {0 if 'nod' in abl else 1792*1024}")
    kappa()
    for c in range(4): E(f"v_mov_b32 v{36+c}, 0")
    E("s_cmp_ge_u32 s42, 56"); E("s_cbranch_scc1 L_h2w")
    epoch_load(50)
    selectors(40,4)
    E.safe()
    E("s_lshl_b32 s28, s42, 11"); E(f"s_add_u32 s28, s28, {WS_GP}")
    E("v_and_b32 v1, 15, v0"); E("v_lshrrev_b32 v3, 4, v0"); E("v_lshlrev_b32 v2, 4, v1"); E("v_lshlrev_b32 v1, 7, v1"); E("v_lshl_add_u32 v1, v3, 4, v1")
    E("v_lshl_add_u32 v2, v3, 13, v2"); E("v_add_u32 v48, 4096, v2")
    E("s_lshl_b32 s31, s42, 15"); E("s_lshl_b32 s32, s41, 8"); E("s_add_u32 s31, s31, s32")
    E("s_waitcnt vmcnt(0)"); E.vm=[]; tag_from(50); tag_bits(4)
    lds_wait(trigB//2, 4, "L_trB", 16)
    poll(["buffer_load_dwordx4 v[8:11], v1, s[16:19], s28 offen sc1","buffer_load_dwordx4 v[12:15], v1, s[16:19], s28 offen offset:64 sc1"], lambda: check([8,12],4,4), False, sleep=32)
    stamp(1)
    def dload(j): E(f"buffer_load_dwordx4 v[{64+4*j}:{67+4*j}], v{2 if j<4 else 48}, s[20:23], s31 offen offset:{(j&3)*1024} nt",('d',j))
    dload(0); dload(1)
    E.safe()
    for m in ("quad_perm:[1,0,3,2]","quad_perm:[2,3,0,1]"):
        for c in range(8): E(f"v_add_f32_dpp v{8+c}, v{8+c}, v{8+c} {m} {DPP}")
    for c in range(8): rbf(8+c,8+c)
    E.safe()
    E("s_mov_b32 s33, 0x3d372713")
    for c in range(8): E(f"v_mul_f32 v{16+c}, v{8+c}, v{8+c}")
    for c in range(8): E(f"v_mul_f32 v{16+c}, v{16+c}, v{8+c}")
    for c in range(8): E(f"v_fma_f32 v{16+c}, v{16+c}, s33, v{8+c}")
    for c in range(8): E(f"v_mul_f32 v{16+c}, 0xc0135761, v{16+c}")
    E.safe()
    for c in range(8): E(f"v_exp_f32 v{16+c}, v{16+c}")
    for c in range(8): E(f"v_add_f32 v{16+c}, 1.0, v{16+c}")
    for c in range(8): E(f"v_rcp_f32 v{16+c}, v{16+c}")
    for c in range(8): E(f"v_mul_f32 v{16+c}, v{16+c}, v{8+c}")
    E.safe()
    for c in range(8): rbf(16+c,16+c)
    E("s_mov_b32 vcc_lo, 0xff00ff00"); E("s_mov_b32 vcc_hi, 0xff00ff00")
    for c in range(8): E(f"v_cndmask_b32 v{8+c}, v{16+c}, v{8+c}, vcc")
    E.safe()
    for c in range(8): E(f"v_mul_f32_dpp v{16+c}, v{8+c}, v{8+c} row_ror:8 {DPP}")
    for c in range(4): E(f"v_cvt_pk_bf16_f32 v{24+c}, v{16+2*c}, v{17+2*c}")
    for j in range(8):
        a=28+4*(j&1); buildA(a,24+(j>>1),j&1,40); E.wait_tag(('d',j))
        if j+2<8: dload(j+2)
        E(f"v_mfma_f32_16x16x32_bf16 v[36:39], v[{a}:{a+3}], v[{64+4*j}:{67+4*j}], v[36:39]")
        E.safe()
    E.label("L_h2w")
    E("v_lshlrev_b32 v3, 4, v0")
    E(f"ds_write_b128 v3, v[36:39] offset:{L_Y}"); E("s_waitcnt lgkmcnt(0)")
    stamp(2)
    finish()
    E.safe()

    E.label("L_stream"); E.vm=svm
    def setup1():
        srd(12,0x8000000); srd(20,0 if "nowo" in abl else 0x400000)
        E(f"v_lshlrev_b32 v{vV}, 4, v0")
        for k in range(1,4):
            m=0x11111111<<k
            E(f"s_mov_b32 s{42+2*k}, {hex(m)}"); E(f"s_mov_b32 s{43+2*k}, {hex(m)}")
        E("v_mov_b32 v3, 0xffff0000"); E(f"v_mov_b32 v{vM0}, 0xffff")
        E(f"v_cndmask_b32 v{vM0}, v{vM0}, v3, s[44:45]"); E(f"v_cndmask_b32 v{vM1}, 0, v{vM0}, s[46:47]"); E(f"v_cndmask_b32 v{vM1}, v{vM1}, v3, s[48:49]")
        E(f"v_cndmask_b32 v{vM0}, v{vM0}, 0, s[46:47]"); E(f"v_cndmask_b32 v{vM0}, v{vM0}, 0, s[48:49]")
        E(f"v_mov_b32 v{vMX}, 0xff800000")
        for k in range(8): E(f"v_mov_b32 v{ACC+k}, 0")
        E("s_lshl_b32 s29, s3, 8"); E(f"v_lshl_add_u32 v{vPA}, v0, 2, s29"); E("s_lshl_b32 s29, s3, 2"); E(f"v_mov_b32 v{vCA}, s29")
        E(f"v_mov_b32 v{vCT}, {ctrl[2] if ctrl else 0}"); E("s_mov_b64 vcc, 0")
    def progress(i):
        if ctrl:
            E("s_waitcnt lgkmcnt(0)"); E(f"v_cmp_lt_i32 vcc, {[0,2,1,3][(i//2)%4]}, v{vCT}")
        elif i not in (trigA,trigB): return
        E(f"v_mov_b32 v{vTM}, {i//2}"); E(f"ds_write_b32 v{vPA}, v{vTM} offset:{L_PR}")
        if ctrl: E(f"ds_read_b32 v{vCT}, v{vCA} offset:{L_CT}")
    def qready():
        stamp(1)
        E(f"s_mov_b32 s50, {SPIN*8}"); E("v_mov_b32 v3, 0")
        E.label("L_qw")
        E(f"ds_read_b64 v[{T[0]}:{T[1]}], v3 offset:{L_FLAG}"); E(f"ds_read_b128 v[{vQ}:{vQ+3}], v{vV} offset:{L_Q}")
        E("s_waitcnt lgkmcnt(0)")
        E(f"v_cmp_ne_u32 vcc, 0, v{T[0]}"); E("s_cbranch_vccnz L_qx")
        E("s_sub_u32 s50, s50, 1"); E("s_cbranch_scc0 L_qw")
        E.label("L_qx")
        E(f"v_readfirstlane_b32 s36, v{T[1]}")
        stamp(2)
    dnext=[0]; pend=[]
    def k_reduce(items):
        tt={n:(T[2*i],T[2*i+1]) for i,(n,d) in enumerate(items)}
        for n,d in items:
            a,b=tt[n]; E(f"v_mov_b32_dpp v{a}, v{d} quad_perm:[0,0,0,0] {DPP}"); E(f"v_mov_b32_dpp v{b}, v{d+2} quad_perm:[2,2,2,2] {DPP}")
        for n,d in items:
            a,b=tt[n]; E(f"v_add_f32_dpp v{a}, v{d+1}, v{a} quad_perm:[1,1,1,1] {DPP}"); E(f"v_add_f32_dpp v{b}, v{d+3}, v{b} quad_perm:[3,3,3,3] {DPP}")
        for n,d in items:
            a,b=tt[n]; t=n>>2; j=n&3
            if j==0: E(f"v_add_f32 v{S+t}, v{a}, v{b}")
            else:
                E(f"v_add_f32 v{a}, v{a}, v{b}"); E(f"v_cndmask_b32 v{S+t}, v{S+t}, v{a}, s[{42+2*j}:{43+2*j}]")
            if j==3:
                rbf(S+t,S+t); E(f"v_mul_f32 v{S+t}, 0x3db504f3, v{S+t}"); rbf(S+t,S+t); E(f"v_max_f32 v{vMX}, v{vMX}, v{S+t}")
    def k_consume(ns):
        new=[]
        for n in ns:
            d=D[dnext[0]%4]; dnext[0]+=1; r=RING0+4*slot[('K',n)]
            E(f"v_mfma_f32_16x16x32_bf16 v[{d}:{d+3}], v[{r}:{r+3}], v[{vQ}:{vQ+3}], 0"); release(('K',n)); new.append((n,d))
        if pend: k_reduce(list(pend))
        pend[:]=new
    def allred(op, v, t):
        E(f"{op}_dpp v{v}, v{v}, v{v} quad_perm:[1,0,3,2] {DPP}"); E(f"{op}_dpp v{v}, v{v}, v{v} quad_perm:[2,3,0,1] {DPP}")
        E(f"v_mov_b32 v{t}, v{v}"); E(f"v_permlane16_swap_b32 v{t}, v{v}"); E(f"{op} v{v}, v{v}, v{t}")
        E(f"v_mov_b32 v{t}, v{v}"); E(f"v_permlane32_swap_b32 v{t}, v{v}"); E(f"{op} v{v}, v{v}, v{t}")
    def sm_head():
        k_reduce(list(pend)); pend[:]=[]
        stamp(3)
        allred("v_max_f32", vMX, 3); E(f"v_mov_b32 v{vL}, 0")
    def sm_chunk(ts):
        for t in ts: E(f"v_sub_f32 v{S+t}, v{S+t}, v{vMX}")
        for t in ts: E(f"v_mul_f32 v{S+t}, {hex(LOG2E)}, v{S+t}")
        for t in ts: E(f"v_exp_f32 v{S+t}, v{S+t}")
        for t in ts: E(f"v_add_f32 v{vL}, v{vL}, v{S+t}")
        for t in ts: E(f"v_cvt_pk_bf16_f32 v{S+t}, v{S+t}, v{S+t}")
    def sm_tail():
        allred("v_add_f32", vL, 3)
        E(f"v_lshlrev_b32 v3, 1, v0"); E("s_lshl_b32 s29, s3, 5"); E("v_add_u32 v3, s29, v3")
        E("s_mov_b64 exec, 0x1111"); E(f"ds_write_b64 v3, v[{vMX}:{vL}] offset:{L_ML}"); E("s_mov_b64 exec, -1")
        stamp(4)
    xn=[0]
    def v_consume(n):
        x=X[xn[0]%2]; xn[0]+=1; t=n>>2; j=n&3; r=RING0+4*slot[('V',n)]
        E(f"v_and_b32_dpp v{x}, v{S+t}, v{vM0} quad_perm:[{j},{j},{j},{j}] {DPP}")
        E(f"v_and_b32_dpp v{x+1}, v{S+t}, v{vM1} quad_perm:[{j},{j},{j},{j}] {DPP}")
        return (x,r,n)
    def v_mfma(x,r,n):
        E(f"v_mfma_f32_16x16x16_bf16 v[{ACC}:{ACC+3}], v[{x}:{x+1}], v[{r}:{r+1}], v[{ACC}:{ACC+3}]")
        E(f"v_mfma_f32_16x16x16_bf16 v[{ACC+4}:{ACC+7}], v[{x}:{x+1}], v[{r+2}:{r+3}], v[{ACC+4}:{ACC+7}]")
        release(('V',n))
    def tail_setup_a():
        assert all(s in free for s in RES)
        tag_bits(8)
        E(f"s_mov_b32 s34, 0xff00ff00"); E(f"s_mov_b32 s35, 0xff00ff00")
        E(f"v_cndmask_b32 v{SEL}, v{vM0}, 0, s[34:35]"); E(f"v_cndmask_b32 v{SEL+1}, v{vM1}, 0, s[34:35]")
        E(f"v_cndmask_b32 v{SEL+2}, 0, v{vM0}, s[34:35]"); E(f"v_cndmask_b32 v{SEL+3}, 0, v{vM1}, s[34:35]")
    def tail_setup_b():
        kappa()
        E(f"v_bfe_u32 v{CT}, v0, 2, 1"); E(f"v_lshlrev_b32 v{PA}, 18, v{CT}")
        E(f"v_lshrrev_b32 v{CT}, 3, v0"); E(f"v_lshl_add_u32 v{PA}, v{CT}, 11, v{PA}")
        E(f"v_and_b32 v{CT}, 3, v0"); E(f"v_lshl_add_u32 v{PA}, v{CT}, 4, v{PA}")
        E(f"v_lshrrev_b32 v{CT}, 4, v0")
        E("s_lshr_b32 s31, s42, 3"); E("s_lshl_b32 s31, s31, 15"); E("s_and_b32 s29, s42, 7"); E("s_lshl_b32 s29, s29, 8"); E("s_add_u32 s31, s31, s29")
        E("s_lshl_b32 s29, s3, 6"); E("s_add_u32 s31, s31, s29"); E(f"s_add_u32 s31, s31, {WS_OP}"); E("s_add_u32 s33, s31, 16384")
        E("s_lshl_b32 s30, s42, 2"); E("s_add_u32 s30, s30, s3"); E("s_lshl_b32 s30, s30, 14"); E("s_lshl_b32 s29, s41, 8"); E("s_add_u32 s30, s30, s29")
        E(f"v_and_b32 v{WA}, 15, v0"); E(f"v_lshlrev_b32 v{WA}, 4, v{WA}"); E(f"v_lshl_add_u32 v{WA}, v{CT}, 10, v{WA}")
        E("s_lshl_b32 s32, s41, 16"); E("s_lshl_b32 s29, s42, 10"); E("s_add_u32 s32, s32, s29"); E(f"s_add_u32 s32, s32, {WS_YP}")
        E(f"v_mov_b32 v{MH}, 0xffffff00")
        E(f"v_lshlrev_b32 v{OA}, 5, v0"); E("s_lshl_b32 s29, s3, 11"); E(f"v_add_u32 v{OA}, s29, v{OA}")
        E("s_lshl_b32 s29, s3, 10"); E(f"v_add_u32 v{vK}, s29, v{vV}")
        for k in range(4): E(f"v_mov_b32 v{D[0]+k}, 0")
    acts=[('q',)]+[('K',n) for n in range(128)]+[('smh',)]+[('smc',list(range(8*c,8*c+8))) for c in range(4)]+[('smt',)]+[('V',n) for n in range(128)]
    ai=0
    def do_actions(step):
        nonlocal ai
        if ai>=len(acts): return
        a=acts[ai]
        if a[0]=='q':
            if step<qstep: return
            qready(); ai+=1; a=acts[ai]
        if a[0]=='K':
            ns=[]
            while len(ns)<cu and acts[ai][0]=='K' and E.landed(acts[ai]) and acts[ai] in slot: ns.append(acts[ai][1]); ai+=1
            if ns: k_consume(ns)
            return
        if a[0]=='smh': sm_head(); ai+=1; return
        if a[0]=='smc': sm_chunk(a[1]); ai+=1; return
        if a[0]=='smt': sm_tail(); ai+=1; return
        if a[0]=='V':
            c=0; st=[]
            while c<2 and ai<len(acts) and acts[ai] in slot and E.landed(acts[ai]):
                st.append(v_consume(acts[ai][1])); ai+=1; c+=1
            for s_ in st: v_mfma(*s_)
    setup1()
    for i in range(N0,len(seq)):
        N=pace[i%len(pace)]
        if tail:
            for (i0,hi) in tail:
                if i>=i0: N=hi
        if ctrl and N<ctrl[1]:
            E.wait_n(ctrl[1]-1)
            E(f"s_cbranch_vccnz L_w{i}"); E.raw(f"    s_waitcnt vmcnt({ctrl[0]-1})"); E.label(f"L_w{i}")
        else: E.wait_n(N-1)
        issue(seq[i])
        if i==100: reserve[0]=True
        do_actions(i)
        if i==170: tail_setup_a()
        if i==172: tail_setup_b()
        if i%2==0 and i<256: progress(i)
        E.safe()
    while ai<len(acts):
        a=acts[ai]; assert a[0]=='V'
        st=v_consume(a[1]); E.wait_tag(a); v_mfma(*st); ai+=1
    stamp(5)
    E(f"ds_write_b128 v{OA}, v[{ACC}:{ACC+3}] offset:{L_O}"); E(f"ds_write_b128 v{OA}, v[{ACC+4}:{ACC+7}] offset:{L_O+16}")
    E("s_waitcnt lgkmcnt(0)"); E("s_barrier")
    stamp(6)
    if "notail" in abl or "nopolls" in abl: E("s_branch L_fin")
    C0=D[0]
    E("s_cmp_lg_u32 s3, 0"); E("s_cbranch_scc1 L_noc")
    E(f"ds_read_b128 v[{C0}:{C0+3}], v{vV} offset:{L_Y}"); E(f"ds_read_b32 v{vCT}, v{vCA} offset:{L_FLAG+16}")
    E.label("L_noc")
    if d1: E(f"s_sleep {d1}")
    poll([f"buffer_load_dwordx4 v[{U0}:{U0+3}], v{PA}, s[16:19], s31 offen {lpol}", f"buffer_load_dwordx4 v[{U1}:{U1+3}], v{PA}, s[16:19], s33 offen {lpol}"], lambda: check([U0,U1],CT,8), "quad")
    stamp(7)
    for k in (0,2,1,3): E(f"v_add_f32 v{U0+k}, v{U0+k}, v{U1+k}")
    E(f"v_permlane32_swap_b32 v{U0}, v{U0+2}"); E(f"v_permlane32_swap_b32 v{U0+1}, v{U0+3}")
    E(f"v_add_f32 v{U0}, v{U0}, v{U0+2}"); E(f"v_add_f32 v{U0+1}, v{U0+1}, v{U0+3}")
    E(f"v_permlane16_swap_b32 v{U0}, v{U0+1}"); E(f"v_add_f32 v{U0}, v{U0}, v{U0+1}")
    E(f"v_add_f32_dpp v{U0}, v{U0}, v{U0} row_ror:8 {DPP}")
    E(f"v_cvt_pk_bf16_f32 v{PK}, v{U0}, v{U0}")
    E("s_waitcnt lgkmcnt(0)")
    for j in range(5):
        if j<4:
            for k in range(4): E(f"v_and_b32_dpp v{S+4*j+k}, v{PK}, v{SEL+k} quad_perm:[{j},{j},{j},{j}] {DPP}")
        if j>0:
            r=RING0+4*slot[('W',j-1)]
            E(f"v_mfma_f32_16x16x32_bf16 v[{C0}:{C0+3}], v[{S+4*j-4}:{S+4*j-1}], v[{r}:{r+3}], v[{C0}:{C0+3}]")
    E("s_cmp_eq_u32 s3, 0"); E("s_cbranch_scc1 L_s0")
    h=list(E.hist)
    E(f"ds_write_b128 v{vK}, v[{C0}:{C0+3}] offset:{L_Y}"); E("s_waitcnt lgkmcnt(0)"); E("s_barrier")
    finish()
    E.label("L_s0"); E.hist=h
    E(f"v_readfirstlane_b32 s47, v{vCT}")
    E("s_barrier")
    for k in range(3): E(f"ds_read_b128 v[{S+4*k}:{S+4*k+3}], v{vV} offset:{L_Y+1024*(k+1)}")
    for k in range(3):
        E(f"s_waitcnt lgkmcnt({2-k})")
        for c in range(4): E(f"v_add_f32 v{C0+c}, v{C0+c}, v{S+4*k+c}")
    tag_insert(C0,MH)
    store_sel(f"buffer_store_dwordx4 v[{C0}:{C0+3}], v{vV}, s[16:19], s32 offen")
    stamp(8)
    finish()
    if dbg:
        E.label("L_dbg")
        E("s_memrealtime s[78:79]"); E("s_getreg_b32 s80, hwreg(HW_REG_XCC_ID)")
        E("s_waitcnt lgkmcnt(0)")
        if probe:
            pw,pwave,pk=probe
            E(f"s_cmp_lg_u32 s2, {pw}"); E("s_cbranch_scc1 L_end"); E(f"s_cmp_lg_u32 s3, {pwave}"); E("s_cbranch_scc1 L_end")
            E(f"s_add_u32 s29, s{60+2*pk}, 8000"); E("s_mov_b32 s50, 0x100000")
            E.label("L_spin"); E("s_memrealtime s[82:83]"); E("s_waitcnt lgkmcnt(0)"); E("s_sub_u32 s30, s82, s29"); E("s_cmp_ge_i32 s30, 0"); E("s_cbranch_scc1 L_end")
            E("s_sub_u32 s50, s50, 1"); E("s_cbranch_scc0 L_spin"); E("s_branch L_end")
        E("s_mov_b64 exec, -1"); E("v_mov_b32 v1, 0")
        for k in range(11): E(f"v_writelane_b32 v1, s{60+2*k}, {k}")
        E("v_writelane_b32 v1, s50, 11")
        E("s_lshl_b32 s29, s2, 3"); E("s_add_u32 s29, s29, s3"); E("s_lshl_b32 s29, s29, 6"); E(f"s_add_u32 s29, s29, {WS_DBG}")
        E("v_mbcnt_lo_u32_b32 v2, -1, 0"); E("v_lshlrev_b32 v2, 2, v2"); E("s_mov_b64 exec, 0xffff")
        E("buffer_store_dword v1, v2, s[16:19], s29 offen")
    E.label("L_end")
    E("s_endpgm")
    return E

HEAD=open(os.path.join(os.path.dirname(os.path.abspath(__file__)),"head.txt")).read()
def wrap(body):
    return HEAD+f"""; @launch grid=(256,1,1) block=(512,1,1) lds={LDS_SIZE}
.amdgcn_target "amdgcn-amd-amdhsa--gfx950"
.text
.globl {KN}
.p2align 12
.p2align 8
.type {KN},@function
{KN}:
"""+body+f"""
.section .rodata,"a"
.p2align 6
.amdhsa_kernel {KN}
  .amdhsa_next_free_vgpr 256
  .amdhsa_next_free_sgpr 96
  .amdhsa_accum_offset 256
  .amdhsa_group_segment_fixed_size 0
  .amdhsa_kernarg_size 96
  .amdhsa_user_sgpr_count 2
  .amdhsa_user_sgpr_kernarg_segment_ptr 1
  .amdhsa_system_sgpr_workgroup_id_x 1
.end_amdhsa_kernel
"""
ENTRY_OFF=0x300
def build_text(**kw):
    E=gen(**kw); warm=kw.get("warm",True)
    lines=E.out
    if not warm:
        return wrap("\n".join(l for l in lines if not l.startswith("@SAFE")))
    t="\n".join((f"SAFE{l[5:]}:" if l.startswith("@SAFE") else l) for l in lines)+"\nL_pad0:\n"
    tmp=f"gen_p1_{os.getpid()}.s"; open(tmp,"w").write(wrap(t))
    subprocess.run(["clang","-x","assembler","-target","amdgcn-amd-amdhsa","-mcpu=gfx950","-c",tmp,"-o",tmp+".o"],check=True)
    nm=subprocess.run(["llvm-readelf","-s",tmp+".o"],capture_output=True,text=True).stdout
    addr={}
    for ln in nm.splitlines():
        p=ln.split()
        if len(p)>=8 and p[7].startswith("SAFE"): addr[int(p[7][4:])]=int(p[1],16)
    chosen=[]; nxt=3072
    for k in sorted(addr):
        a=addr[k]+ENTRY_OFF+8*len(chosen)
        if a>=nxt:
            chosen.append(k); nxt=(a//1024+1)*1024
    out=[]
    for l in lines:
        if l.startswith("@SAFE"):
            k=int(l[5:])
            if k in chosen:
                i=chosen.index(k); tgt=f"L_pad{i+1}" if i+1<len(chosen) else "L_padret"
                out.append(f"L_pad{i}:"); out.append("    s_cmp_eq_u32 s51, 1"); out.append(f"    s_cbranch_scc1 {tgt}")
        else: out.append(l)
    return wrap("\n".join(out))
if __name__=="__main__":
    kw=eval("dict("+(sys.argv[2] if len(sys.argv)>2 else "")+")")
    open(sys.argv[1],"w").write(build_text(**kw))
```

```python
import sys, subprocess, re, os
sys.path.insert(0, os.path.dirname(os.path.abspath(__file__)))
from emit import Em
KN="parallel_sum__gqa_block_cached__geglu_ffn__decode_kernel"
DPP="row_mask:0xf bank_mask:0xf"
WS_EPOCH=0; WS_PR=0x1000; WS_LS=0x4000; WS_YX=0x8000; WS_QP=0x10000; WS_GP=0x30000; WS_OP=0x80000; WS_YP=0x100000; WS_DBG=0x180000; WS_SIZE=0x200000
L_FLAG=0; L_ML=64; L_Q=1024; L_XN=2048; L_O=4096; L_Y=12288; L_PR=16384; L_CT=256; LDS_SIZE=17408
SPIN=0x4000
LOG2E=0x3fb8aa3b

def spread(v,bits): return sum(((v>>k)&1)<<b for k,b in enumerate(bits))

def gen(pace=(5,), tail=None, qstep=43, trigA=28, trigB=100, trigC=170, dbg=False, warm=True, cu=2, probe=None,
        sbits=(15,17,18,21), tbits=(14,16,19,20,22), hwin=None, abl=(), ctrl=(5,7,1,4,2), cstop=480, csleep=0, outsc='', pre=('yx','op','yl'), d1=0, d2=0, d3=0, force=None, lpol='sc1', wearly=None, trigD=200, ppol='sc1', gstat=None):
    E=Em()
    def stamp(k):
        if dbg: E(f"s_memrealtime s[{60+2*k}:{61+2*k}]")
    def finish():
        if dbg: E("s_branch L_dbg")
        else: E("s_endpgm")
        E.reset()
    def epoch_load(v):
        E(f"v_mov_b32 v{v}, 0"); E(f"buffer_load_dword v{v}, v{v}, s[16:19], 0 offen offset:{WS_EPOCH} sc1")
    def tag_from(v):
        E(f"v_readfirstlane_b32 s36, v{v}"); E("s_add_u32 s36, s36, 0x01010101")
    def tag_bits(bits):
        for k in range(4): E(f"s_bfe_u32 s{37+k}, s36, {hex((bits<<16)|(8*k))}")
    def tag_insert(r, vmask):
        for k in range(4): E(f"v_and_or_b32 v{r+k}, v{r+k}, v{vmask}, s{37+k}")
    def check(units, t, bits):
        for n,a in enumerate(units):
            for k in range(4): E(f"v_xor_b32 v{a+k}, s{37+k}, v{a+k}")
            if n==0: E(f"v_or_b32 v{t}, v{a}, v{a+1}")
            else: E(f"v_or3_b32 v{t}, v{a}, v{a+1}, v{t}")
            E(f"v_or3_b32 v{t}, v{a+2}, v{a+3}, v{t}")
        E(f"v_and_b32 v{t}, {hex((1<<bits)-1)}, v{t}")
        E(f"v_cmp_ne_u32 vcc, 0, v{t}")
    pollid=[0]
    def poll(loads, chk, masked, sleep=0):
        k=pollid[0]; pollid[0]+=1
        if not masked and "nog" in abl: return
        if not masked and "once" in abl:
            for l in loads: E(l)
            E("s_waitcnt vmcnt(0)"); E.vm=[]; return
        E(f"s_mov_b32 s50, {SPIN}")
        E.label(f"L_poll{k}")
        for l in loads: E(l)
        E("s_waitcnt vmcnt(0)"); E.vm=[]
        chk()
        E(f"s_cbranch_vccz L_pollx{k}")
        if masked=="quad": E("s_wqm_b64 exec, vcc")
        elif masked=="col":
            E("s_or_b32 s29, vcc_lo, vcc_hi"); E("s_lshr_b32 s35, s29, 16"); E("s_or_b32 s29, s29, s35"); E("s_and_b32 s29, s29, 0xffff")
            E("s_mul_i32 exec_lo, s29, 0x10001"); E("s_mov_b32 exec_hi, exec_lo")
        if sleep: E(f"s_sleep {sleep}")
        E("s_sub_u32 s50, s50, 1"); E(f"s_cbranch_scc0 L_poll{k}")
        E.label(f"L_pollx{k}")
        if masked in ("quad","col"): E("s_mov_b64 exec, -1")
    def poll_pipe(mk, m, sleep, masked):
        k=pollid[0]; pollid[0]+=1
        n=len(mk(0)[0])
        E(f"s_mov_b32 s50, {SPIN}")
        for j in range(m-1):
            for l in mk(j)[0]: E(l)
            if sleep: E(f"s_sleep {sleep+1}")
        E.label(f"L_poll{k}")
        for j in range(m):
            for l in mk((j+m-1)%m)[0]: E(l)
            E(f"s_waitcnt vmcnt({n*(m-1)})")
            mk(j)[1]()
            E(f"s_cbranch_vccz L_pollx{k}")
            if masked=="quad": E("s_wqm_b64 exec, vcc")
            else:
                E("s_or_b32 s29, vcc_lo, vcc_hi"); E("s_lshr_b32 s35, s29, 16"); E("s_or_b32 s29, s29, s35"); E("s_and_b32 s29, s29, 0xffff")
                E("s_mul_i32 exec_lo, s29, 0x10001"); E("s_mov_b32 exec_hi, exec_lo")
            if sleep: E(f"s_sleep {sleep}")
        E("s_sub_u32 s50, s50, 1"); E(f"s_cbranch_scc0 L_poll{k}")
        E.label(f"L_pollx{k}"); E.vm=[]
        E("s_mov_b64 exec, -1")
    def lds_wait(thr, t, name, sleep):
        E(f"s_mov_b32 s50, {SPIN*4}"); E(f"v_mov_b32 v{t}, 0")
        E.label(name)
        E(f"ds_read_b32 v{t+1}, v{t} offset:{L_PR}"); E("s_waitcnt lgkmcnt(0)")
        E(f"v_cmp_le_u32 vcc, {thr}, v{t+1}"); E(f"s_cbranch_vccnz {name}x")
        E(f"s_sleep {sleep}"); E("s_sub_u32 s50, s50, 1"); E(f"s_cbranch_scc0 {name}")
        E.label(name+"x")
    def selectors(sel, t):
        E(f"v_and_b32 v{t}, 1, v0"); E(f"v_cmp_eq_u32 vcc, 1, v{t}")
        E(f"v_mov_b32 v{t+1}, 0x0c0c0100"); E(f"v_mov_b32 v{t+2}, 0x01000c0c"); E(f"v_cndmask_b32 v{t+1}, v{t+1}, v{t+2}, vcc")
        E(f"v_mov_b32 v{t+2}, 0x0c0c0302"); E(f"v_mov_b32 v{t+3}, 0x03020c0c"); E(f"v_cndmask_b32 v{t+2}, v{t+2}, v{t+3}, vcc")
        E(f"v_bfe_u32 v{t}, v0, 3, 1"); E(f"v_bfe_u32 v{t+3}, v0, 1, 1"); E(f"v_lshl_add_u32 v{t}, v{t}, 1, v{t+3}")
        E(f"v_mov_b32 v{t+3}, 0x0c0c0c0c")
        for k in range(4):
            E(f"v_cmp_eq_u32 vcc, {k}, v{t}")
            E(f"v_cndmask_b32 v{sel+2*k}, v{t+3}, v{t+1}, vcc"); E(f"v_cndmask_b32 v{sel+2*k+1}, v{t+3}, v{t+2}, vcc")
    def buildA(dst, pk, par, sel):
        for k in range(4): E(f"v_perm_b32 v{dst+k}, v{pk}, v{pk}, v{sel+2*k+par}")
    def rbf(d, s):
        E(f"v_cvt_pk_bf16_f32 v{d}, v{s}, v{s}"); E(f"v_and_b32 v{d}, 0xffff0000, v{d}")
    def srd(base, size):
        E(f"s_mov_b32 s{base+2}, {hex(size)}"); E(f"s_mov_b32 s{base+3}, 0x20000")
    def kappa():
        E("s_bfe_u32 s41, s2, 0x20003"); E("s_and_b32 s42, s2, 7"); E("s_lshl_b32 s42, s42, 3"); E("s_lshr_b32 s29, s2, 5"); E("s_or_b32 s42, s42, s29")
    def pres_load(v, tag=None):
        E(f"v_and_b32 v{v}, 7, v0"); E(f"v_lshlrev_b32 v{v}, 2, v{v}"); E(f"buffer_load_dword v{v}, v{v}, s[84:87], s88 offen sc1", tag)
    def pres_eval(v):
        E("s_mul_i32 s47, s89, 0x01010101"); E(f"v_cmp_ne_u32 vcc, s47, v{v}"); E("s_cmp_eq_u64 vcc, 0"); E("s_cselect_b32 s47, 1, 0")
        if force is not None: E(f"s_mov_b32 s47, {force}")
    stid=[0]
    def store_sel(text):
        k=stid[0]; stid[0]+=1
        E("s_cmp_eq_u32 s47, 1"); E(f"s_cbranch_scc1 L_st{k}")
        h=list(E.hist); E(text+" sc1"); E(f"s_branch L_stx{k}")
        E.label(f"L_st{k}"); E.hist=h; E.vm.pop(); E(text); E.label(f"L_stx{k}")

    E("s_load_dwordx2 s[8:9], s[0:1], 8")
    E("s_load_dwordx2 s[16:17], s[0:1], 88")
    stamp(0)
    E("v_lshrrev_b32 v3, 6, v0")
    E("s_cmp_ge_u32 s2, 256"); E("s_cbranch_scc1 L_end0")
    E("v_readfirstlane_b32 s3, v3")
    E("v_and_b32 v0, 63, v0")
    E("s_mov_b32 s51, 0")
    srd(16, WS_SIZE)
    E("s_and_b32 s6, s2, 15"); E("s_lshr_b32 s7, s2, 4")
    E("s_cmp_ge_u32 s3, 4"); E("s_cbranch_scc1 L_helper")

    vK,vV,vM0,vM1,vMX,vL,vQ=1,2,4,5,6,7,8
    D=[12,16,20,24]; T=[28,29,30,31]; X=[32,34]; ACC=36; S=44; vPA,vCA,vCT,vTM=76,77,78,79; RING0=80; NSLOT=44
    SEL=216; PA=226; OA=227; MH=230; WA=231; U0=232; U1=236; O=240; PK=244; CT=246
    E("s_lshl_b32 s26, s6, 23"); E("s_lshl_b32 s29, s3, 12"); E("s_or_b32 s26, s26, s29")
    k=0
    while k<4:
        n=1
        while k+n<4 and sbits[k+n]==sbits[k]+n: n+=1
        E(f"s_bfe_u32 s29, s7, {hex((n<<16)|k)}"); E(f"s_lshl_b32 s29, s29, {sbits[k]}"); E("s_or_b32 s26, s26, s29"); k+=n
    E("s_mov_b32 s28, s26")
    E("v_and_b32 v1, 3, v0"); E("v_lshlrev_b32 v1, 4, v1"); E("v_lshrrev_b32 v3, 4, v0"); E("v_lshl_add_u32 v1, v3, 6, v1")
    E("v_bfe_u32 v3, v0, 2, 2"); E("v_lshl_add_u32 v1, v3, 8, v1")
    srd(8, 0x8000000)
    E("s_waitcnt lgkmcnt(0)")
    seq=[('K',n) for n in range(128)]+[('V',n) for n in range(128)]+[('W',n) for n in range(4)]
    if wearly is not None:
        seq=seq[:256]
        for n in range(4): seq.insert(wearly[0]+n*wearly[1],('W',n))
    free=list(range(NSLOT)); slot={}
    reserve=[False]
    RES=set(range((SEL-RING0)//4, NSLOT))
    def release(tag): free.append(slot[tag])
    def issue(tag):
        cand=[s for s in free if not (reserve[0] and s in RES)]
        assert cand, ("ring exhausted",tag)
        s=cand[0]; free.remove(s); slot[tag]=s; r=RING0+4*s
        kind,n=tag
        if kind=='K': E(f"buffer_load_dwordx4 v[{r}:{r+3}], v{vK}, s[8:11], s28 offen offset:{(n&3)*1024} nt",tag)
        elif kind=='V': E(f"buffer_load_dwordx4 v[{r}:{r+3}], v{vV}, s[12:15], s28 offen offset:{(n&3)*1024} nt",tag)
        else:
            E(f"buffer_load_dwordx4 v[{r}:{r+3}], v{WA}, s[20:23], s30 offen nt",tag)
            if n<3: E("s_add_u32 s30, s30, 4096")
        if kind in 'KV' and (n&3)==3 and tag!=('V',127):
            E(f"s_or_b32 s28, s26, {hex(spread(((n>>2)+1)&31,tbits))}")
    N0=pace[0]
    for i in range(N0): issue(seq[i])
    E("s_load_dwordx2 s[12:13], s[0:1], 16"); E("s_load_dwordx2 s[20:21], s[0:1], 32")
    E("s_setprio 2")
    E("s_barrier")
    E("s_branch L_stream")
    svm=list(E.vm); E.reset()
    E.label("L_end0"); E("s_endpgm"); E.reset()

    E.label("L_helper")
    E("v_mov_b32 v4, 0"); E("v_lshlrev_b32 v2, 2, v0"); E(f"ds_write_b32 v2, v4 offset:0")
    E(f"v_mov_b32 v5, {ctrl[2] if ctrl else 0}"); E(f"ds_write_b32 v2, v5 offset:{L_CT}"); E("v_lshlrev_b32 v5, 4, v0"); E(f"ds_write_b32 v5, v4 offset:{L_PR}")
    E("s_load_dwordx2 s[24:25], s[0:1], 0"); E("s_load_dwordx2 s[4:5], s[0:1], 24"); E("s_load_dwordx4 s[52:55], s[0:1], 48"); E("s_load_dwordx4 s[56:59], s[0:1], 64")
    E("s_load_dwordx2 s[84:85], s[0:1], 80")
    srd(24,2048); E("s_mov_b32 s23, 0x20000"); srd(84,256)
    E("s_getreg_b32 s89, hwreg(HW_REG_XCC_ID)"); E("s_and_b32 s89, s89, 7"); E("s_add_u32 s89, s89, 1"); E("s_and_b32 s88, s2, 7"); E("s_lshl_b32 s88, s88, 5")
    E("s_cmp_eq_u32 s3, 4"); E("s_cbranch_scc1 L_h0")
    E("s_waitcnt lgkmcnt(0)"); E("s_barrier")
    E("s_cmp_eq_u32 s3, 7"); E("s_cbranch_scc1 L_h3")
    E("s_cmp_eq_u32 s3, 5"); E("s_cbranch_scc1 L_h1")
    E("s_lshr_b32 s29, s2, 3"); E("v_mov_b32 v4, s29"); E("v_mov_b32 v5, s89")
    E("s_mov_b64 exec, 1"); E("buffer_store_byte v5, v4, s[84:87], s88 offen"); E("s_mov_b64 exec, -1")
    E("s_branch L_h2"); E.reset()
    E.label("L_h0")
    E("s_and_b32 s29, s2, 7"); E("s_lshr_b32 s30, s2, 6"); E("s_bfe_u32 s31, s2, 0x20004")
    E("s_lshl_b32 s32, s29, 2"); E("s_add_u32 s32, s32, s30")
    E("s_lshl_b32 s35, s29, 1"); E("s_and_b32 s30, s30, 1"); E("s_or_b32 s30, s30, s35")
    E("s_lshr_b32 s35, s2, 7"); E("s_lshl_b32 s35, s35, 10")
    E("s_lshl_b32 s34, s30, 13"); E("s_add_u32 s34, s34, s35"); E("s_lshl_b32 s35, s31, 7"); E("s_add_u32 s34, s34, s35"); E(f"s_add_u32 s34, s34, {WS_GP}")
    E("s_lshl_b32 s33, s32, 11"); E("s_lshl_b32 s35, s31, 9"); E("s_add_u32 s33, s33, s35"); E(f"s_add_u32 s33, s33, {WS_QP}")
    E("v_lshlrev_b32 v2, 4, v0"); E("v_lshrrev_b32 v3, 4, v0"); E("v_and_b32 v1, 15, v0"); E("v_lshlrev_b32 v1, 4, v1")
    E("s_bitcmp1_b32 s2, 3")
    E("s_cselect_b32 s34, s34, s33"); E("s_cselect_b32 s32, s30, s32"); E("s_cselect_b32 s33, 3584, 0"); E("s_cselect_b32 s43, s29, 0")
    E(f"s_cselect_b32 s22, {512*3584}, 0"); E("s_cselect_b32 s44, 11, 6"); E("s_cselect_b32 s45, 9, 16"); E("s_cselect_b32 s46, 6, 8")
    E("s_bitcmp0_b32 s2, 3"); E("s_cselect_b32 s33, 8192, s33"); E("s_cselect_b32 s22, 0x400000, s22")
    E("s_lshl_b32 s28, s32, 8"); E("s_lshl_b32 s30, s33, 7"); E("s_mul_i32 s30, s30, s31"); E("s_add_u32 s28, s28, s30")
    E("s_lshl_b32 s30, s33, 5"); E("v_mad_u32_u24 v1, v3, s30, v1")
    E("s_waitcnt lgkmcnt(0)")
    E("buffer_load_dwordx4 v[4:7], v2, s[24:27], 0 offen"); E("buffer_load_dwordx4 v[8:11], v2, s[24:27], 0 offen offset:1024")
    epoch_load(78)
    E("s_barrier")
    E("s_bitcmp1_b32 s2, 7"); E("s_cselect_b32 s20, s54, s52"); E("s_cselect_b32 s21, s55, s53")
    E("s_bitcmp0_b32 s2, 3"); E("s_cselect_b32 s20, s4, s20"); E("s_cselect_b32 s21, s5, s21")
    E("s_cmp_eq_u32 s43, 7"); E("s_cbranch_scc1 L_h0skip")
    if "now" in abl: E("s_mov_b32 s22, 0")
    nfirst = 32 if hwin is None else hwin
    def wload(j): E(f"buffer_load_dwordx4 v[{128+4*j}:{131+4*j}], v1, s[20:23], s28 offen nt",('w',j)); E("s_add_u32 s28, s28, s33")
    for j in range(nfirst): wload(j)
    E("v_and_b32 v76, 3, v0"); E("v_lshlrev_b32 v76, 4, v76"); E("v_bfe_u32 v28, v0, 2, 2"); E("v_lshl_add_u32 v76, v28, s44, v76")
    E("v_bfe_u32 v28, v0, 4, 1"); E("v_lshl_add_u32 v76, v28, s45, v76"); E("v_lshrrev_b32 v28, 5, v0"); E("v_lshl_add_u32 v76, v28, s46, v76")
    selectors(40,28)
    E.safe()
    E.wait_n(nfirst)
    stamp(1)
    for b in range(2):
        for k in range(4):
            E(f"v_lshlrev_b32 v{12+8*b+2*k}, 16, v{4+4*b+k}"); E(f"v_and_b32 v{13+8*b+2*k}, 0xffff0000, v{4+4*b+k}")
    def red2(a,c,t):
        E(f"v_permlane32_swap_b32 v{a}, v{c}"); E(f"v_add_f32 v{a}, v{a}, v{c}")
        E(f"v_mov_b32 v{t}, v{a}"); E(f"v_permlane16_swap_b32 v{t}, v{a}"); E(f"v_add_f32 v{a}, v{a}, v{t}")
        for m in (1,2,4,8): E(f"v_add_f32_dpp v{a}, v{a}, v{a} row_ror:{m} {DPP}")
        E(f"v_mul_f32 v{a}, 0x3b000000, v{a}")
    for b in range(2): E(f"v_add_f32 v{28+b}, v{12+8*b}, v{13+8*b}")
    for k in range(2,8):
        for b in range(2): E(f"v_add_f32 v{28+b}, v{28+b}, v{12+8*b+k}")
    red2(28,29,30)
    E("v_readlane_b32 s52, v28, 0"); E("v_readlane_b32 s53, v28, 32")
    rbf(31,28)
    E.safe()
    for k in range(8):
        for b in range(2):
            E(f"v_subrev_f32 v{32+b}, s{52+b}, v{12+8*b+k}")
            if k==0: E(f"v_mul_f32 v{34+b}, v{32+b}, v{32+b}")
            else: E(f"v_fmac_f32 v{34+b}, v{32+b}, v{32+b}")
    red2(34,35,30)
    rbf(34,34); E("v_add_f32 v34, 0x3727c5ac, v34"); rbf(34,34); E("v_sqrt_f32 v34, v34"); rbf(34,34); E("v_rcp_f32 v34, v34")
    E("v_readlane_b32 s54, v31, 0"); E("v_readlane_b32 s55, v31, 32"); E("v_readlane_b32 s56, v34, 0"); E("v_readlane_b32 s57, v34, 32")
    E.safe()
    for b in range(2):
        for k in range(8): E(f"v_subrev_f32 v{12+8*b+k}, s{54+b}, v{12+8*b+k}")
        for k in range(4): E(f"v_cvt_pk_bf16_f32 v{4+4*b+k}, v{12+8*b+2*k}, v{13+8*b+2*k}")
        for k in range(4):
            E(f"v_lshlrev_b32 v{12+8*b+2*k}, 16, v{4+4*b+k}"); E(f"v_and_b32 v{13+8*b+2*k}, 0xffff0000, v{4+4*b+k}")
        for k in range(8): E(f"v_mul_f32 v{12+8*b+k}, s{56+b}, v{12+8*b+k}")
        for k in range(4): E(f"v_cvt_pk_bf16_f32 v{4+4*b+k}, v{12+8*b+2*k}, v{13+8*b+2*k}")
        E(f"ds_write_b128 v2, v[{4+4*b}:{7+4*b}] offset:{L_XN+1024*b}")
        E.safe()
    E("v_bfe_u32 v28, v0, 2, 1"); E("v_lshlrev_b32 v28, 10, v28"); E("v_lshrrev_b32 v29, 4, v0"); E("v_lshl_add_u32 v28, v29, 6, v28")
    E("s_lshl_b32 s30, s31, 8"); E("v_add_u32 v28, s30, v28")
    for k in range(4): E(f"ds_read_b128 v[{48+4*k}:{51+4*k}], v28 offset:{L_XN+16*k}")
    E("v_mov_b32 v77, 0xfffffff0")
    tag_from(78); tag_bits(4)
    if hwin is None: pres_load(79,'ps')
    E("s_waitcnt lgkmcnt(0)")
    stamp(2)
    for j in range(32):
        a=64+4*(j&1)
        buildA(a, 48+(j>>1), j&1, 40)
        E.wait_tag(('w',j))
        if j+nfirst<32: wload(j+nfirst)
        if j+nfirst==31: pres_load(79,'ps')
        E(f"v_mfma_f32_16x16x32_bf16 v[72:75], v[{a}:{a+3}], v[{128+4*j}:{131+4*j}], "+("0" if j==0 else "v[72:75]"))
        E.safe()
    tag_insert(72,77)
    E.wait_tag('ps'); pres_eval(79)
    if dbg: E("s_mov_b32 s74, s47")
    if "nost" not in abl: store_sel("buffer_store_dwordx4 v[72:75], v76, s[16:19], s34 offen")
    stamp(3)
    E("s_branch L_red"); E.reset()
    E.label("L_h0skip")
    E("s_waitcnt vmcnt(0)"); tag_from(78)
    E("s_branch L_red"); E.reset()
    E.safe()
    E.label("L_h1")
    epoch_load(44)
    E("s_lshl_b32 s28, s6, 13"); E(f"s_add_u32 s28, s28, {WS_QP}")
    E("v_and_b32 v3, 3, v0"); E("v_lshlrev_b32 v3, 4, v3")
    E("v_lshrrev_b32 v2, 4, v0"); E("v_lshl_add_u32 v2, v2, 6, v3"); E("v_bfe_u32 v3, v0, 2, 2"); E("v_lshl_add_u32 v2, v3, 11, v2")
    E("s_waitcnt vmcnt(0)"); tag_from(44); tag_bits(4)
    lds_wait(trigA//2, 4, "L_trA", 2)
    stamp(1)
    E.safe()
    poll([f"buffer_load_dwordx4 v[{8+4*k}:{11+4*k}], v2, s[16:19], s28 offen offset:{k*256} sc1" for k in range(8)],
         lambda: check([8+4*k for k in range(8)],4,4), False, sleep=8)
    if dbg: E("s_mov_b32 s76, s50")
    E.safe()
    for rho in range(1,4):
        for c in range(8): E(f"v_add_f32 v{8+c}, v{8+c}, v{8+8*rho+c}")
    for c in range(4): E(f"v_cvt_pk_bf16_f32 v{40+c}, v{8+2*c}, v{9+2*c}")
    E("v_lshlrev_b32 v3, 4, v0"); E(f"ds_write_b128 v3, v[40:43] offset:{L_Q}")
    E("v_mov_b32 v4, 0"); E("v_mov_b32 v6, 1"); E("v_mov_b32 v7, s36"); E("s_waitcnt lgkmcnt(0)"); E(f"ds_write_b64 v4, v[6:7] offset:{L_FLAG}")
    stamp(2)
    E.label("L_red"); E.reset()
    E("s_sub_u32 s29, s3, 4"); E("s_lshl_b32 s30, s29, 1")
    E("v_lshrrev_b32 v1, 5, v0"); E("v_add_u32 v1, s30, v1")
    E("v_lshlrev_b32 v2, 3, v1")
    E(f"s_mov_b32 s50, {SPIN*4}")
    E.label("L_mlw")
    for s_ in range(4): E(f"ds_read_b64 v[{8+2*s_}:{9+2*s_}], v2 offset:{L_ML+32*s_}")
    E("s_waitcnt lgkmcnt(0)")
    E("v_min_u32 v4, v9, v11"); E("v_min3_u32 v4, v4, v13, v15"); E("v_cmp_eq_u32 vcc, 0, v4")
    E("s_cbranch_vccz L_mlx")
    E("s_sleep 16"); E("s_sub_u32 s50, s50, 1"); E("s_cbranch_scc0 L_mlw")
    E.label("L_mlx")
    E.safe()
    stamp(4)
    pres_load(52)
    E("v_max_f32 v16, v8, v10"); E("v_max3_f32 v16, v16, v12, v14")
    for s_ in range(4): E(f"v_sub_f32 v{20+s_}, v{8+2*s_}, v16")
    for s_ in range(4): E(f"v_mul_f32 v{20+s_}, {hex(LOG2E)}, v{20+s_}")
    for s_ in range(4): E(f"v_exp_f32 v{20+s_}, v{20+s_}")
    E("v_mul_f32 v17, v20, v9")
    for s_ in range(1,4): E(f"v_fmac_f32 v17, v{20+s_}, v{9+2*s_}")
    E("v_mov_b32 v18, s36"); E("v_not_b32 v19, s36")
    E("s_lshl_b32 s33, s6, 10"); E(f"s_add_u32 s33, s33, {WS_LS}"); E("s_lshl_b32 s35, s7, 4"); E("s_add_u32 s32, s33, s35")
    E("v_lshlrev_b32 v3, 8, v1"); E("v_and_b32 v6, 15, v0"); E("v_lshl_add_u32 v6, v6, 4, v3")
    E("s_lshl_b32 s34, s6, 4"); E("s_add_u32 s34, s34, s7"); E("s_lshl_b32 s34, s34, 11"); E(f"s_add_u32 s34, s34, {WS_OP}")
    E("v_lshlrev_b32 v26, 4, v0"); E("s_lshl_b32 s35, s29, 10"); E("v_add_u32 v26, s35, v26")
    E("s_waitcnt vmcnt(0)"); E.vm=[]; pres_eval(52)
    E("v_mov_b32 v4, 0"); E("v_mov_b32 v5, s47"); E(f"ds_write_b32 v4, v5 offset:{L_FLAG+16}")
    E("s_mov_b32 exec_lo, 1"); E("s_mov_b32 exec_hi, 1")
    store_sel("buffer_store_dwordx4 v[16:19], v3, s[16:19], s32 offen")
    E("s_mov_b64 exec, -1")
    E.safe()
    lds_wait(trigC//2, 4, "L_trE", 16)
    def chkl():
        E("v_xor_b32 v10, s36, v10"); E("v_xnor_b32 v11, s36, v11"); E("v_or_b32 v10, v10, v11"); E("v_cmp_ne_u32 vcc, 0, v10")
    poll(["buffer_load_dwordx4 v[8:11], v6, s[16:19], s33 offen sc1"], chkl, "all", sleep=16)
    E("v_mov_b32 v12, v8")
    for m in (1,2,4,8): E(f"v_max_f32_dpp v12, v12, v12 row_ror:{m} {DPP}")
    E("v_sub_f32 v8, v8, v12"); E("v_sub_f32 v16, v16, v12"); E(f"v_mul_f32 v8, {hex(LOG2E)}, v8"); E(f"v_mul_f32 v16, {hex(LOG2E)}, v16")
    E("v_exp_f32 v8, v8"); E("v_exp_f32 v16, v16"); E("v_mul_f32 v8, v8, v9")
    for m in (1,2,4,8): E(f"v_add_f32_dpp v8, v8, v8 row_ror:{m} {DPP}")
    E("v_rcp_f32 v8, v8"); E("v_mul_f32 v16, v16, v8")
    for s_ in range(4): E(f"v_mul_f32 v{20+s_}, v{20+s_}, v16")
    tag_bits(8); E("v_mov_b32 v24, 0xffffff00")
    E.safe()
    if "op" in pre:
        if trigD: lds_wait(trigD//2, 4, "L_trD", 16)
        E("buffer_load_dwordx4 v[52:55], v26, s[16:19], s34 offen "+ppol)
        if "yl" in pre:
            kappa(); E("s_lshl_b32 s32, s41, 16"); E("s_lshl_b32 s35, s42, 10"); E("s_add_u32 s32, s32, s35"); E(f"s_add_u32 s32, s32, {WS_YP}")
            E("v_lshrrev_b32 v56, 1, v26"); E("buffer_load_dwordx2 v[56:57], v56, s[16:19], s32 offen "+ppol)
        E("s_waitcnt vmcnt(0)"); E.vm=[]
    E("s_waitcnt lgkmcnt(0)")
    stamp(5)
    E.safe()
    E("s_setprio 3")
    E("s_barrier")
    for s_ in range(4): E(f"ds_read_b128 v[{32+4*s_}:{35+4*s_}], v26 offset:{L_O+2048*s_}")
    for s_ in range(4):
        E(f"s_waitcnt lgkmcnt({3-s_})")
        for c in range(4): E((f"v_mul_f32 v{28+c}, v20, v{32+c}") if s_==0 else f"v_fmac_f32 v{28+c}, v{20+s_}, v{32+4*s_+c}")
    tag_insert(28,24)
    if "notail" not in abl: store_sel("buffer_store_dwordx4 v[28:31], v26, s[16:19], s34 offen")
    stamp(6)
    finish()
    E.safe()
    E.label("L_h3")
    E("s_mov_b32 s20, s58"); E("s_mov_b32 s21, s59"); E("s_mov_b32 s22, 2048")
    if warm:
        if warm!="walk":
            E("s_getpc_b64 s[4:5]"); E.label("L_pc")
            E(f"s_sub_u32 s4, s4, L_pc-{KN}"); E("s_subb_u32 s5, s5, 0")
            E("s_bfe_u32 s29, s2, 0x40003"); E("s_lshl_b32 s29, s29, 11"); E("v_lshlrev_b32 v1, 7, v0"); E("v_add_u32 v1, s29, v1")
            E(f"v_min_u32 v1, L_end-{KN}, v1")
            E("s_mov_b64 exec, 0xffff"); E("global_load_dword v2, v1, s[4:5]"); E("s_mov_b64 exec, -1")
            E("s_waitcnt vmcnt(0)"); E.vm=[]
        E("s_mov_b32 s51, 1"); E("s_branch L_pad0")
        E.label("L_padret"); E("s_mov_b32 s51, 0")
    stamp(1)
    epoch_load(50)
    if ctrl:
        lo,hi,d0,off,sh=ctrl
        E("v_and_b32 v1, 3, v0"); E("v_lshlrev_b32 v2, 2, v1"); E("v_lshlrev_b32 v1, 8, v1")
        E("v_and_b32 v3, 31, v0"); E("v_lshlrev_b32 v3, 2, v3")
        E("s_lshl_b32 s28, s89, 8"); E(f"s_add_u32 s28, s28, {WS_PR}")
        E("s_lshr_b32 s29, s2, 3"); E("s_lshl_b32 s29, s29, 2"); E("v_mov_b32 v8, s29")
    E("s_waitcnt vmcnt(0)"); E.vm=[]
    tag_from(50)
    if ctrl:
        E("s_and_b32 s33, s36, 0xfffffc00"); E(f"s_mov_b32 s50, {SPIN}")
        E.label("L_cl")
        E(f"ds_read_b32 v10, v1 offset:{L_PR}"); E("s_waitcnt lgkmcnt(0)")
        E(f"v_add_u32_dpp v11, v10, v10 quad_perm:[1,0,3,2] {DPP}"); E(f"v_add_u32_dpp v11, v11, v11 quad_perm:[2,3,0,1] {DPP}")
        E("v_or_b32 v12, s33, v11"); E("v_readfirstlane_b32 s31, v11")
        E("s_mov_b64 exec, 1"); E("buffer_store_dword v12, v8, s[16:19], s28 offen"); E("s_mov_b64 exec, -1")
        E(f"s_cmp_ge_u32 s31, {cstop}"); E("s_cbranch_scc1 L_cx")
        E("buffer_load_dword v13, v3, s[16:19], s28 offen sc1")
        E("s_waitcnt vmcnt(0)"); E.vm=[]
        E("v_xor_b32 v13, s33, v13"); E("v_cmp_gt_u32 vcc, 0x400, v13"); E("v_cndmask_b32 v13, v11, v13, vcc")
        for m in (1,2,4,8): E(f"v_add_u32_dpp v13, v13, v13 row_ror:{m} {DPP}")
        E("v_mov_b32 v14, v13"); E("v_permlane16_swap_b32 v14, v13"); E("v_add_u32 v13, v13, v14")
        E("v_lshlrev_b32 v14, 7, v10"); E("v_sub_u32 v13, v13, v14")
        E(f"v_add_u32 v13, {off*32 + (d0<<(5+sh)) + (1<<(4+sh))}, v13"); E(f"v_ashrrev_i32 v13, {5+sh}, v13")
        E(f"ds_write_b32 v2, v13 offset:{L_CT}")
        if csleep: E(f"s_sleep {csleep}")
        E("s_sub_u32 s50, s50, 1"); E("s_cbranch_scc0 L_cl")
        E.label("L_cx")
        E.safe()
    kappa()
    if not ctrl: lds_wait(cstop//4, 4, "L_trC", 16)
    E("s_and_b32 s30, s42, 7"); E("s_and_b32 s43, s2, 7")
    E("v_and_b32 v6, 3, v0"); E("v_lshrrev_b32 v4, 5, v0"); E("v_lshl_add_u32 v6, v4, 2, v6"); E("v_lshlrev_b32 v6, 4, v6")
    E("v_bfe_u32 v3, v0, 2, 3"); E("v_lshl_add_u32 v1, v3, 10, v6"); E("v_lshlrev_b32 v5, 4, v0")
    E("v_and_b32 v2, 7, v0"); E("v_lshlrev_b32 v2, 4, v2"); E("v_lshrrev_b32 v3, 4, v0"); E("v_lshl_add_u32 v2, v3, 1, v2")
    E("s_lshl_b32 s44, s41, 16"); E("s_lshl_b32 s31, s43, 13"); E("s_add_u32 s44, s44, s31"); E(f"s_add_u32 s44, s44, {WS_YP}")
    E("s_lshl_b32 s31, s30, 10"); E("s_add_u32 s48, s44, s31")
    E("s_lshl_b32 s31, s30, 7"); E("s_add_u32 s44, s44, s31")
    E("s_lshl_b32 s45, s41, 3"); E("s_add_u32 s45, s45, s30"); E("s_lshl_b32 s45, s45, 10"); E(f"s_add_u32 s45, s45, {WS_YX}")
    E("s_lshl_b32 s46, s43, 7"); E("s_add_u32 s46, s46, s45")
    E("s_bfe_u32 s32, s30, 0x10001"); E("s_lshl_b32 s32, s32, 10"); E("s_lshl_b32 s33, s41, 8"); E("s_add_u32 s32, s32, s33")
    E("s_and_b32 s33, s30, 1"); E("s_lshl_b32 s33, s33, 7"); E("s_add_u32 s32, s32, s33"); E("s_lshr_b32 s33, s30, 2"); E("s_lshl_b32 s33, s33, 3"); E("s_add_u32 s32, s32, s33")
    tag_bits(8)
    E("v_mov_b32 v32, s36"); E("v_mov_b32 v34, 0"); E("v_mov_b32 v35, 0xffffff00")
    E("s_cmp_lg_u32 s30, s43"); E("s_cbranch_scc1 L_nown")
    E("buffer_load_ushort v30, v2, s[24:27], s32 offen")
    if "yx" in pre: E("buffer_load_dwordx4 v[12:15], v5, s[16:19], s45 offen sc1")
    E.label("L_nown")
    E("s_waitcnt vmcnt(0)"); E.vm=[]
    stamp(2)
    E.safe()
    E("s_setprio 3")
    E("s_barrier"); E("s_barrier")
    if "notail" in abl or "nopolls" in abl: E("s_branch L_fin")
    if d2: E(f"s_sleep {d2}")
    stamp(3)
    poll(["buffer_load_dwordx4 v[8:11], v1, s[16:19], s44 offen "+lpol], lambda: check([8],4,8), "all")
    if dbg: E("s_mov_b32 s76, s50")
    stamp(6)
    for m in ("row_ror:4","row_ror:8"):
        for c in range(4): E(f"v_add_f32_dpp v{8+c}, v{8+c}, v{8+c} {m} {DPP}")
    for c in range(4): E(f"v_mov_b32 v{16+c}, v{8+c}")
    for c in range(4): E(f"v_permlane16_swap_b32 v{16+c}, v{8+c}")
    for c in range(4): E(f"v_add_f32 v{8+c}, v{8+c}, v{16+c}")
    tag_insert(8,35)
    E("s_mov_b32 exec_lo, 15"); E("s_mov_b32 exec_hi, 15")
    E("buffer_store_dwordx4 v[8:11], v6, s[16:19], s46 offen sc1")
    E("s_mov_b64 exec, -1")
    stamp(7)
    E("s_cmp_lg_u32 s30, s43"); E("s_cbranch_scc1 L_fin")
    E("v_lshlrev_b32 v30, 16, v30")
    if d3: E(f"s_sleep {d3}")
    poll(["buffer_load_dwordx4 v[12:15], v5, s[16:19], s45 offen sc1"], lambda: check([12],4,8), "all")
    stamp(4)
    E("v_permlane32_swap_b32 v12, v14"); E("v_permlane32_swap_b32 v13, v15")
    E("v_add_f32 v12, v12, v14"); E("v_add_f32 v13, v13, v15")
    E("v_permlane16_swap_b32 v12, v13"); E("v_add_f32 v12, v12, v13")
    E(f"v_add_f32_dpp v12, v12, v12 row_ror:8 {DPP}")
    E("v_add_f32 v12, v12, v30"); E("v_cvt_pk_bf16_f32 v12, v12, v12")
    E("s_mov_b32 exec_lo, 0x00ff00ff"); E("s_mov_b32 exec_hi, 0x00ff00ff")
    E("buffer_store_short v12, v2, s[20:23], s32 offen "+outsc)
    E("s_cmp_lg_u32 s2, 0"); E("s_cbranch_scc1 L_fin2")
    E("s_mov_b64 exec, 1")
    E(f"buffer_store_dword v32, v34, s[16:19], 0 offen offset:{WS_EPOCH} sc1")
    E.label("L_fin2")
    stamp(5)
    E.label("L_fin")
    finish()
    E.safe()
    E.label("L_h2")
    E("s_mov_b32 s20, s56"); E("s_mov_b32 s21, s57"); E(f"s_mov_b32 s22, {0 if 'nod' in abl else 1792*1024}")
    kappa()
    for c in range(4): E(f"v_mov_b32 v{36+c}, 0")
    E("s_cmp_ge_u32 s42, 56"); E("s_cbranch_scc1 L_h2w")
    epoch_load(50)
    selectors(40,4)
    E.safe()
    E("s_lshl_b32 s28, s42, 11"); E(f"s_add_u32 s28, s28, {WS_GP}")
    E("v_and_b32 v1, 15, v0"); E("v_lshrrev_b32 v3, 4, v0"); E("v_lshlrev_b32 v2, 4, v1"); E("v_lshlrev_b32 v1, 7, v1"); E("v_lshl_add_u32 v1, v3, 4, v1")
    E("v_lshl_add_u32 v2, v3, 13, v2"); E("v_add_u32 v48, 4096, v2")
    E("s_lshl_b32 s31, s42, 15"); E("s_lshl_b32 s32, s41, 8"); E("s_add_u32 s31, s31, s32")
    E("s_waitcnt vmcnt(0)"); E.vm=[]; tag_from(50); tag_bits(4)
    lds_wait(trigB//2, 4, "L_trB", 16)
    poll(["buffer_load_dwordx4 v[8:11], v1, s[16:19], s28 offen sc1","buffer_load_dwordx4 v[12:15], v1, s[16:19], s28 offen offset:64 sc1"], lambda: check([8,12],4,4), False, sleep=32)
    stamp(1)
    def dload(j): E(f"buffer_load_dwordx4 v[{64+4*j}:{67+4*j}], v{2 if j<4 else 48}, s[20:23], s31 offen offset:{(j&3)*1024} nt",('d',j))
    dload(0); dload(1)
    E.safe()
    for m in ("quad_perm:[1,0,3,2]","quad_perm:[2,3,0,1]"):
        for c in range(8): E(f"v_add_f32_dpp v{8+c}, v{8+c}, v{8+c} {m} {DPP}")
    for c in range(8): rbf(8+c,8+c)
    E.safe()
    E("s_mov_b32 s33, 0x3d372713")
    for c in range(8): E(f"v_mul_f32 v{16+c}, v{8+c}, v{8+c}")
    for c in range(8): E(f"v_mul_f32 v{16+c}, v{16+c}, v{8+c}")
    for c in range(8): E(f"v_fma_f32 v{16+c}, v{16+c}, s33, v{8+c}")
    for c in range(8): E(f"v_mul_f32 v{16+c}, 0xc0135761, v{16+c}")
    E.safe()
    for c in range(8): E(f"v_exp_f32 v{16+c}, v{16+c}")
    for c in range(8): E(f"v_add_f32 v{16+c}, 1.0, v{16+c}")
    for c in range(8): E(f"v_rcp_f32 v{16+c}, v{16+c}")
    for c in range(8): E(f"v_mul_f32 v{16+c}, v{16+c}, v{8+c}")
    E.safe()
    for c in range(8): rbf(16+c,16+c)
    E("s_mov_b32 vcc_lo, 0xff00ff00"); E("s_mov_b32 vcc_hi, 0xff00ff00")
    for c in range(8): E(f"v_cndmask_b32 v{8+c}, v{16+c}, v{8+c}, vcc")
    E.safe()
    for c in range(8): E(f"v_mul_f32_dpp v{16+c}, v{8+c}, v{8+c} row_ror:8 {DPP}")
    for c in range(4): E(f"v_cvt_pk_bf16_f32 v{24+c}, v{16+2*c}, v{17+2*c}")
    for j in range(8):
        a=28+4*(j&1); buildA(a,24+(j>>1),j&1,40); E.wait_tag(('d',j))
        if j+2<8: dload(j+2)
        E(f"v_mfma_f32_16x16x32_bf16 v[36:39], v[{a}:{a+3}], v[{64+4*j}:{67+4*j}], v[36:39]")
        E.safe()
    E.label("L_h2w")
    E("v_lshlrev_b32 v3, 4, v0")
    E(f"ds_write_b128 v3, v[36:39] offset:{L_Y}"); E("s_waitcnt lgkmcnt(0)")
    stamp(2)
    finish()
    E.safe()

    E.label("L_stream"); E.vm=svm
    def setup1():
        srd(12,0x8000000); srd(20,0 if "nowo" in abl else 0x400000)
        E(f"v_lshlrev_b32 v{vV}, 4, v0")
        for k in range(1,4):
            m=0x11111111<<k
            E(f"s_mov_b32 s{42+2*k}, {hex(m)}"); E(f"s_mov_b32 s{43+2*k}, {hex(m)}")
        E("v_mov_b32 v3, 0xffff0000"); E(f"v_mov_b32 v{vM0}, 0xffff")
        E(f"v_cndmask_b32 v{vM0}, v{vM0}, v3, s[44:45]"); E(f"v_cndmask_b32 v{vM1}, 0, v{vM0}, s[46:47]"); E(f"v_cndmask_b32 v{vM1}, v{vM1}, v3, s[48:49]")
        E(f"v_cndmask_b32 v{vM0}, v{vM0}, 0, s[46:47]"); E(f"v_cndmask_b32 v{vM0}, v{vM0}, 0, s[48:49]")
        E(f"v_mov_b32 v{vMX}, 0xff800000")
        for k in range(8): E(f"v_mov_b32 v{ACC+k}, 0")
        E("s_lshl_b32 s29, s3, 8"); E(f"v_lshl_add_u32 v{vPA}, v0, 2, s29"); E("s_lshl_b32 s29, s3, 2"); E(f"v_mov_b32 v{vCA}, s29")
        E(f"v_mov_b32 v{vCT}, {ctrl[2] if ctrl else 0}"); E("s_mov_b64 vcc, 0")
    def progress(i):
        if ctrl:
            E("s_waitcnt lgkmcnt(0)"); E(f"v_cmp_lt_i32 vcc, {[0,2,1,3][(i//2)%4]}, v{vCT}")
        elif i not in (trigA,trigB): return
        E(f"v_mov_b32 v{vTM}, {i//2}"); E(f"ds_write_b32 v{vPA}, v{vTM} offset:{L_PR}")
        if ctrl: E(f"ds_read_b32 v{vCT}, v{vCA} offset:{L_CT}")
    def qready():
        stamp(1)
        E(f"s_mov_b32 s50, {SPIN*8}"); E("v_mov_b32 v3, 0")
        E.label("L_qw")
        E(f"ds_read_b64 v[{T[0]}:{T[1]}], v3 offset:{L_FLAG}"); E(f"ds_read_b128 v[{vQ}:{vQ+3}], v{vV} offset:{L_Q}")
        E("s_waitcnt lgkmcnt(0)")
        E(f"v_cmp_ne_u32 vcc, 0, v{T[0]}"); E("s_cbranch_vccnz L_qx")
        E("s_sub_u32 s50, s50, 1"); E("s_cbranch_scc0 L_qw")
        E.label("L_qx")
        E(f"v_readfirstlane_b32 s36, v{T[1]}")
        stamp(2)
    dnext=[0]; pend=[]
    def k_reduce(items):
        tt={n:(T[2*i],T[2*i+1]) for i,(n,d) in enumerate(items)}
        for n,d in items:
            a,b=tt[n]; E(f"v_mov_b32_dpp v{a}, v{d} quad_perm:[0,0,0,0] {DPP}"); E(f"v_mov_b32_dpp v{b}, v{d+2} quad_perm:[2,2,2,2] {DPP}")
        for n,d in items:
            a,b=tt[n]; E(f"v_add_f32_dpp v{a}, v{d+1}, v{a} quad_perm:[1,1,1,1] {DPP}"); E(f"v_add_f32_dpp v{b}, v{d+3}, v{b} quad_perm:[3,3,3,3] {DPP}")
        for n,d in items:
            a,b=tt[n]; t=n>>2; j=n&3
            if j==0: E(f"v_add_f32 v{S+t}, v{a}, v{b}")
            else:
                E(f"v_add_f32 v{a}, v{a}, v{b}"); E(f"v_cndmask_b32 v{S+t}, v{S+t}, v{a}, s[{42+2*j}:{43+2*j}]")
            if j==3:
                rbf(S+t,S+t); E(f"v_mul_f32 v{S+t}, 0x3db504f3, v{S+t}"); rbf(S+t,S+t); E(f"v_max_f32 v{vMX}, v{vMX}, v{S+t}")
    def k_consume(ns):
        new=[]
        for n in ns:
            d=D[dnext[0]%4]; dnext[0]+=1; r=RING0+4*slot[('K',n)]
            E(f"v_mfma_f32_16x16x32_bf16 v[{d}:{d+3}], v[{r}:{r+3}], v[{vQ}:{vQ+3}], 0"); release(('K',n)); new.append((n,d))
        if pend: k_reduce(list(pend))
        pend[:]=new
    def allred(op, v, t):
        E(f"{op}_dpp v{v}, v{v}, v{v} quad_perm:[1,0,3,2] {DPP}"); E(f"{op}_dpp v{v}, v{v}, v{v} quad_perm:[2,3,0,1] {DPP}")
        E(f"v_mov_b32 v{t}, v{v}"); E(f"v_permlane16_swap_b32 v{t}, v{v}"); E(f"{op} v{v}, v{v}, v{t}")
        E(f"v_mov_b32 v{t}, v{v}"); E(f"v_permlane32_swap_b32 v{t}, v{v}"); E(f"{op} v{v}, v{v}, v{t}")
    def sm_head():
        k_reduce(list(pend)); pend[:]=[]
        stamp(3)
        allred("v_max_f32", vMX, 3); E(f"v_mov_b32 v{vL}, 0")
    def sm_chunk(ts):
        for t in ts: E(f"v_sub_f32 v{S+t}, v{S+t}, v{vMX}")
        for t in ts: E(f"v_mul_f32 v{S+t}, {hex(LOG2E)}, v{S+t}")
        for t in ts: E(f"v_exp_f32 v{S+t}, v{S+t}")
        for t in ts: E(f"v_add_f32 v{vL}, v{vL}, v{S+t}")
        for t in ts: E(f"v_cvt_pk_bf16_f32 v{S+t}, v{S+t}, v{S+t}")
    def sm_tail():
        allred("v_add_f32", vL, 3)
        E(f"v_lshlrev_b32 v3, 1, v0"); E("s_lshl_b32 s29, s3, 5"); E("v_add_u32 v3, s29, v3")
        E("s_mov_b64 exec, 0x1111"); E(f"ds_write_b64 v3, v[{vMX}:{vL}] offset:{L_ML}"); E("s_mov_b64 exec, -1")
        stamp(4)
    xn=[0]
    def v_consume(n):
        x=X[xn[0]%2]; xn[0]+=1; t=n>>2; j=n&3; r=RING0+4*slot[('V',n)]
        E(f"v_and_b32_dpp v{x}, v{S+t}, v{vM0} quad_perm:[{j},{j},{j},{j}] {DPP}")
        E(f"v_and_b32_dpp v{x+1}, v{S+t}, v{vM1} quad_perm:[{j},{j},{j},{j}] {DPP}")
        return (x,r,n)
    def v_mfma(x,r,n):
        E(f"v_mfma_f32_16x16x16_bf16 v[{ACC}:{ACC+3}], v[{x}:{x+1}], v[{r}:{r+1}], v[{ACC}:{ACC+3}]")
        E(f"v_mfma_f32_16x16x16_bf16 v[{ACC+4}:{ACC+7}], v[{x}:{x+1}], v[{r+2}:{r+3}], v[{ACC+4}:{ACC+7}]")
        release(('V',n))
    def tail_setup_a():
        assert all(s in free for s in RES)
        tag_bits(8)
        E(f"s_mov_b32 s34, 0xff00ff00"); E(f"s_mov_b32 s35, 0xff00ff00")
        E(f"v_cndmask_b32 v{SEL}, v{vM0}, 0, s[34:35]"); E(f"v_cndmask_b32 v{SEL+1}, v{vM1}, 0, s[34:35]")
        E(f"v_cndmask_b32 v{SEL+2}, 0, v{vM0}, s[34:35]"); E(f"v_cndmask_b32 v{SEL+3}, 0, v{vM1}, s[34:35]")
    def tail_setup_b():
        kappa()
        E(f"v_bfe_u32 v{CT}, v0, 2, 1"); E(f"v_lshlrev_b32 v{PA}, 18, v{CT}")
        E(f"v_lshrrev_b32 v{CT}, 3, v0"); E(f"v_lshl_add_u32 v{PA}, v{CT}, 11, v{PA}")
        E(f"v_and_b32 v{CT}, 3, v0"); E(f"v_lshl_add_u32 v{PA}, v{CT}, 4, v{PA}")
        E(f"v_lshrrev_b32 v{CT}, 4, v0")
        E("s_lshr_b32 s31, s42, 3"); E("s_lshl_b32 s31, s31, 15"); E("s_and_b32 s29, s42, 7"); E("s_lshl_b32 s29, s29, 8"); E("s_add_u32 s31, s31, s29")
        E("s_lshl_b32 s29, s3, 6"); E("s_add_u32 s31, s31, s29"); E(f"s_add_u32 s31, s31, {WS_OP}"); E("s_add_u32 s33, s31, 16384")
        E("s_lshl_b32 s30, s42, 2"); E("s_add_u32 s30, s30, s3"); E("s_lshl_b32 s30, s30, 14"); E("s_lshl_b32 s29, s41, 8"); E("s_add_u32 s30, s30, s29")
        E(f"v_and_b32 v{WA}, 15, v0"); E(f"v_lshlrev_b32 v{WA}, 4, v{WA}"); E(f"v_lshl_add_u32 v{WA}, v{CT}, 10, v{WA}")
        E("s_lshl_b32 s32, s41, 16"); E("s_lshl_b32 s29, s42, 10"); E("s_add_u32 s32, s32, s29"); E(f"s_add_u32 s32, s32, {WS_YP}")
        E(f"v_mov_b32 v{MH}, 0xffffff00")
        E(f"v_lshlrev_b32 v{OA}, 5, v0"); E("s_lshl_b32 s29, s3, 11"); E(f"v_add_u32 v{OA}, s29, v{OA}")
        E("s_lshl_b32 s29, s3, 10"); E(f"v_add_u32 v{vK}, s29, v{vV}")
        for k in range(4): E(f"v_mov_b32 v{D[0]+k}, 0")
    acts=[('q',)]+[('K',n) for n in range(128)]+[('smh',)]+[('smc',list(range(8*c,8*c+8))) for c in range(4)]+[('smt',)]+[('V',n) for n in range(128)]
    ai=0
    def do_actions(step):
        nonlocal ai
        if ai>=len(acts): return
        a=acts[ai]
        if a[0]=='q':
            if step<qstep: return
            qready(); ai+=1; a=acts[ai]
        if a[0]=='K':
            ns=[]
            while len(ns)<cu and acts[ai][0]=='K' and E.landed(acts[ai]) and acts[ai] in slot: ns.append(acts[ai][1]); ai+=1
            if ns: k_consume(ns)
            return
        if a[0]=='smh': sm_head(); ai+=1; return
        if a[0]=='smc': sm_chunk(a[1]); ai+=1; return
        if a[0]=='smt': sm_tail(); ai+=1; return
        if a[0]=='V':
            c=0; st=[]
            while c<2 and ai<len(acts) and acts[ai] in slot and E.landed(acts[ai]):
                st.append(v_consume(acts[ai][1])); ai+=1; c+=1
            for s_ in st: v_mfma(*s_)
    setup1()
    for i in range(N0,len(seq)):
        N=pace[i%len(pace)]
        if tail:
            for (i0,hi) in tail:
                if i>=i0: N=hi
        if ctrl and N<ctrl[1]:
            E.wait_n(ctrl[1]-1)
            E(f"s_cbranch_vccnz L_w{i}"); E.raw(f"    s_waitcnt vmcnt({ctrl[0]-1})"); E.label(f"L_w{i}")
        else: E.wait_n(N-1)
        issue(seq[i])
        if i==100: reserve[0]=True
        do_actions(i)
        if i==170: tail_setup_a()
        if i==172: tail_setup_b()
        if i%2==0 and i<256: progress(i)
        E.safe()
    while ai<len(acts):
        a=acts[ai]; assert a[0]=='V'
        st=v_consume(a[1]); E.wait_tag(a); v_mfma(*st); ai+=1
    stamp(5)
    E(f"ds_write_b128 v{OA}, v[{ACC}:{ACC+3}] offset:{L_O}"); E(f"ds_write_b128 v{OA}, v[{ACC+4}:{ACC+7}] offset:{L_O+16}")
    E("s_waitcnt lgkmcnt(0)"); E("s_barrier")
    stamp(6)
    if "notail" in abl or "nopolls" in abl: E("s_branch L_fin")
    C0=D[0]
    E("s_cmp_lg_u32 s3, 0"); E("s_cbranch_scc1 L_noc")
    E(f"ds_read_b128 v[{C0}:{C0+3}], v{vV} offset:{L_Y}"); E(f"ds_read_b32 v{vCT}, v{vCA} offset:{L_FLAG+16}")
    E.label("L_noc")
    if d1: E(f"s_sleep {d1}")
    poll([f"buffer_load_dwordx4 v[{U0}:{U0+3}], v{PA}, s[16:19], s31 offen {lpol}", f"buffer_load_dwordx4 v[{U1}:{U1+3}], v{PA}, s[16:19], s33 offen {lpol}"], lambda: check([U0,U1],CT,8), "quad")
    stamp(7)
    for k in (0,2,1,3): E(f"v_add_f32 v{U0+k}, v{U0+k}, v{U1+k}")
    E(f"v_permlane32_swap_b32 v{U0}, v{U0+2}"); E(f"v_permlane32_swap_b32 v{U0+1}, v{U0+3}")
    E(f"v_add_f32 v{U0}, v{U0}, v{U0+2}"); E(f"v_add_f32 v{U0+1}, v{U0+1}, v{U0+3}")
    E(f"v_permlane16_swap_b32 v{U0}, v{U0+1}"); E(f"v_add_f32 v{U0}, v{U0}, v{U0+1}")
    E(f"v_add_f32_dpp v{U0}, v{U0}, v{U0} row_ror:8 {DPP}")
    E(f"v_cvt_pk_bf16_f32 v{PK}, v{U0}, v{U0}")
    E("s_waitcnt lgkmcnt(0)")
    for j in range(5):
        if j<4:
            for k in range(4): E(f"v_and_b32_dpp v{S+4*j+k}, v{PK}, v{SEL+k} quad_perm:[{j},{j},{j},{j}] {DPP}")
        if j>0:
            r=RING0+4*slot[('W',j-1)]
            E(f"v_mfma_f32_16x16x32_bf16 v[{C0}:{C0+3}], v[{S+4*j-4}:{S+4*j-1}], v[{r}:{r+3}], v[{C0}:{C0+3}]")
    E("s_cmp_eq_u32 s3, 0"); E("s_cbranch_scc1 L_s0")
    h=list(E.hist)
    E(f"ds_write_b128 v{vK}, v[{C0}:{C0+3}] offset:{L_Y}"); E("s_waitcnt lgkmcnt(0)"); E("s_barrier")
    finish()
    E.label("L_s0"); E.hist=h
    E(f"v_readfirstlane_b32 s47, v{vCT}")
    E("s_barrier")
    for k in range(3): E(f"ds_read_b128 v[{S+4*k}:{S+4*k+3}], v{vV} offset:{L_Y+1024*(k+1)}")
    for k in range(3):
        E(f"s_waitcnt lgkmcnt({2-k})")
        for c in range(4): E(f"v_add_f32 v{C0+c}, v{C0+c}, v{S+4*k+c}")
    tag_insert(C0,MH)
    store_sel(f"buffer_store_dwordx4 v[{C0}:{C0+3}], v{vV}, s[16:19], s32 offen")
    stamp(8)
    finish()
    if dbg:
        E.label("L_dbg")
        E("s_memrealtime s[78:79]"); E("s_getreg_b32 s80, hwreg(HW_REG_XCC_ID)")
        E("s_waitcnt lgkmcnt(0)")
        if probe:
            pw,pwave,pk=probe
            E(f"s_cmp_lg_u32 s2, {pw}"); E("s_cbranch_scc1 L_end"); E(f"s_cmp_lg_u32 s3, {pwave}"); E("s_cbranch_scc1 L_end")
            E(f"s_add_u32 s29, s{60+2*pk}, 8000"); E("s_mov_b32 s50, 0x100000")
            E.label("L_spin"); E("s_memrealtime s[82:83]"); E("s_waitcnt lgkmcnt(0)"); E("s_sub_u32 s30, s82, s29"); E("s_cmp_ge_i32 s30, 0"); E("s_cbranch_scc1 L_end")
            E("s_sub_u32 s50, s50, 1"); E("s_cbranch_scc0 L_spin"); E("s_branch L_end")
        E("s_mov_b64 exec, -1"); E("v_mov_b32 v1, 0")
        for k in range(11): E(f"v_writelane_b32 v1, s{60+2*k}, {k}")
        E("v_writelane_b32 v1, s50, 11")
        E("s_lshl_b32 s29, s2, 3"); E("s_add_u32 s29, s29, s3"); E("s_lshl_b32 s29, s29, 6"); E(f"s_add_u32 s29, s29, {WS_DBG}")
        E("v_mbcnt_lo_u32_b32 v2, -1, 0"); E("v_lshlrev_b32 v2, 2, v2"); E("s_mov_b64 exec, 0xffff")
        E("buffer_store_dword v1, v2, s[16:19], s29 offen"+(" sc1" if gstat else ""))
        if gstat:
            A_,B_,mul=gstat
            E("s_cmp_lg_u32 s2, 0"); E("s_cbranch_scc1 L_end"); E("s_cmp_lg_u32 s3, 7"); E("s_cbranch_scc1 L_end")
            def spin(name):
                E("s_mov_b32 s50, 0x100000")
                E.label(name); E("s_memrealtime s[82:83]"); E("s_waitcnt lgkmcnt(0)"); E("s_sub_u32 s30, s82, s29"); E("s_cmp_ge_i32 s30, 0"); E(f"s_cbranch_scc1 {name}x")
                E("s_sub_u32 s50, s50, 1"); E(f"s_cbranch_scc0 {name}"); E.label(name+"x")
            E("s_mov_b64 exec, -1"); E("s_add_u32 s29, s60, 7000"); spin("L_sp1")
            def stat(spec,sr):
                op,waves,k,grp=spec
                ins={"max":"v_max_i32","min":"v_min_i32","avg":"v_add_u32"}[op]
                first=True; n=0
                for wv in waves:
                    for i in (range(4) if grp is None else range(1)):
                        if grp is None: E(f"v_lshlrev_b32 v2, 9, v0")
                        else: E("v_and_b32 v2, 31, v0"); E("v_lshlrev_b32 v2, 12, v2")
                        E(f"s_mov_b32 s31, {WS_DBG+(i*64*512 if grp is None else grp*512)+wv*64+k*4}")
                        E("buffer_load_dword v3, v2, s[16:19], s31 offen sc1"); E("s_waitcnt vmcnt(0)"); E("v_subrev_u32 v3, s60, v3")
                        if first: E("v_mov_b32 v4, v3"); first=False
                        else: E(f"{ins} v4, v4, v3")
                        n+=1
                for m in (1,2,4,8): E(f"{ins}_dpp v4, v4, v4 row_ror:{m} {DPP}")
                for sw in ("16","32"): E("v_mov_b32 v5, v4"); E(f"v_permlane{sw}_swap_b32 v5, v4"); E(f"{ins} v4, v4, v5")
                if op=="avg": E(f"v_ashrrev_i32 v4, {(64*n).bit_length()-1}, v4")
                E(f"v_readfirstlane_b32 s{sr}, v4")
            stat(A_,32)
            if B_: stat(B_,33)
            else: E("s_mov_b32 s33, 0")
            E("s_sub_u32 s32, s32, s33"); E(f"s_mul_i32 s32, s32, {mul}"); E("s_add_u32 s29, s60, s32"); E("s_add_u32 s29, s29, 10000"); spin("L_sp2")
    E.label("L_end")
    E("s_endpgm")
    return E

HEAD=open(os.path.join(os.path.dirname(os.path.abspath(__file__)),"head.txt")).read()
def wrap(body):
    return HEAD+f"""; @launch grid=(256,1,1) block=(512,1,1) lds={LDS_SIZE}
.amdgcn_target "amdgcn-amd-amdhsa--gfx950"
.text
.globl {KN}
.p2align 12
.p2align 8
.type {KN},@function
{KN}:
"""+body+f"""
.section .rodata,"a"
.p2align 6
.amdhsa_kernel {KN}
  .amdhsa_next_free_vgpr 256
  .amdhsa_next_free_sgpr 96
  .amdhsa_accum_offset 256
  .amdhsa_group_segment_fixed_size 0
  .amdhsa_kernarg_size 96
  .amdhsa_user_sgpr_count 2
  .amdhsa_user_sgpr_kernarg_segment_ptr 1
  .amdhsa_system_sgpr_workgroup_id_x 1
.end_amdhsa_kernel
"""
ENTRY_OFF=0x300
def build_text(**kw):
    E=gen(**kw); warm=kw.get("warm",True)
    lines=E.out
    if not warm:
        return wrap("\n".join(l for l in lines if not l.startswith("@SAFE")))
    t="\n".join((f"SAFE{l[5:]}:" if l.startswith("@SAFE") else l) for l in lines)+"\nL_pad0:\n"
    tmp=f"gen_p1_{os.getpid()}.s"; open(tmp,"w").write(wrap(t))
    subprocess.run(["clang","-x","assembler","-target","amdgcn-amd-amdhsa","-mcpu=gfx950","-c",tmp,"-o",tmp+".o"],check=True)
    nm=subprocess.run(["llvm-readelf","-s",tmp+".o"],capture_output=True,text=True).stdout
    addr={}
    for ln in nm.splitlines():
        p=ln.split()
        if len(p)>=8 and p[7].startswith("SAFE"): addr[int(p[7][4:])]=int(p[1],16)
    chosen=[]; nxt=3072
    for k in sorted(addr):
        a=addr[k]+ENTRY_OFF+8*len(chosen)
        if a>=nxt:
            chosen.append(k); nxt=(a//1024+1)*1024
    out=[]
    for l in lines:
        if l.startswith("@SAFE"):
            k=int(l[5:])
            if k in chosen:
                i=chosen.index(k); tgt=f"L_pad{i+1}" if i+1<len(chosen) else "L_padret"
                out.append(f"L_pad{i}:"); out.append("    s_cmp_eq_u32 s51, 1"); out.append(f"    s_cbranch_scc1 {tgt}")
        else: out.append(l)
    return wrap("\n".join(out))
if __name__=="__main__":
    kw=eval("dict("+(sys.argv[2] if len(sys.argv)>2 else "")+")")
    open(sys.argv[1],"w").write(build_text(**kw))
```
